```python
import torch

def _softmax(x, axis=-1):
    return torch.softmax(x, dim=axis)

def _gelu(x):
    return torch.nn.functional.gelu(x, approximate='tanh')

def _silu(x):
    return torch.nn.functional.silu(x)

def _sigmoid(x):
    return torch.sigmoid(x)

def _layernorm(x, axis=-1, eps=1e-05):
    m = x.mean(dim=axis, keepdim=True)
    v = x.var(dim=axis, keepdim=True, unbiased=False)
    return (x - m) / torch.sqrt(v + eps)

def _scatter_add(tgt, idx, src, axis=0):
    return tgt.clone().index_add_(axis, idx, src)

def _segment_sum(src, seg, n):
    out = torch.zeros((n,) + src.shape[1:], dtype=src.dtype)
    return out.index_add_(0, seg, src)

def _pad(x, pw):
    flat = tuple((v for pair in reversed(pw) for v in pair))
    return torch.nn.functional.pad(x, flat)
kernel_name = 'adaLN_cond__mha_block__glu_gated_geglu__prompt'

def setup_inputs():

    _w = lambda a: (lambda t: t.to(torch.bfloat16) if t.is_floating_point() else t)(torch.as_tensor(a))

    def _A_setup():
        B, S, D, H = (1, 2048, 448, 16)
        return {'x': _w((lambda *s: torch.randn(*s, dtype=torch.bfloat16) * 0.05)(B, S, D)), 'wqkv': _w((lambda *s: torch.randn(*s, dtype=torch.bfloat16) * 0.05)(D, 3 * D)), 'wo': _w((lambda *s: torch.randn(*s, dtype=torch.bfloat16) * 0.05)(D, D))}
    _A_in = _A_setup()

    def _B_setup():
        B, S, Dm, Df = (1, 2048, 448, 1792)
        return {'x': _w((lambda *s: torch.randn(*s, dtype=torch.bfloat16) * 0.05)(B, S, Dm)), 'w_gate': _w((lambda *s: torch.randn(*s, dtype=torch.bfloat16) * 0.8)(Dm, Df) * Dm ** (-0.5)), 'w_up': _w((lambda *s: torch.randn(*s, dtype=torch.bfloat16) * 0.8)(Dm, Df) * Dm ** (-0.5)), 'w_down': _w((lambda *s: torch.randn(*s, dtype=torch.bfloat16) * 0.8)(Df, Dm) * Df ** (-0.5))}
    _B_in = _B_setup()
    return {'A_x': _A_in['x'], 'A_wqkv': _A_in['wqkv'], 'A_wo': _A_in['wo'], 'B_x': _B_in['x'], 'B_w_gate': _B_in['w_gate'], 'B_w_up': _B_in['w_up'], 'B_w_down': _B_in['w_down'], 'c': _w((lambda *s: torch.randn(*s, dtype=torch.bfloat16) * 0.1)(1, 448) * 8.0), 'w_mod': _w((lambda *s: torch.randn(*s, dtype=torch.bfloat16) * 0.1)(448, 6 * 448) * 448 ** (-0.5) * 8.0)}

def reference(A_x, A_wqkv, A_wo, B_x, B_w_gate, B_w_up, B_w_down, c, w_mod):

    def _A_ref(x, wqkv, wo):
        B, S, D = x.shape
        H = 16
        Dh = D // H
        qkv = (lambda x, *d: x.permute(*d))((x @ wqkv).reshape(B, S, 3, H, Dh), 2, 0, 3, 1, 4)
        q, k, v = (qkv[0], qkv[1], qkv[2])
        scores = torch.einsum('bhqd,bhkd->bhqk', q, k) * Dh ** (-0.5)
        p = _softmax(scores, axis=-1)
        o = torch.einsum('bhqk,bhkd->bhqd', p, v)
        return (lambda x, *d: x.permute(*d))(o, 0, 2, 1, 3).reshape(B, S, D) @ wo

    def _B_ref(x, w_gate, w_up, w_down):
        g = torch.einsum('bsd,df->bsf', x, w_gate)
        u = torch.einsum('bsd,df->bsf', x, w_up)
        h = _gelu(g) * u
        return torch.einsum('bsf,fd->bsd', h, w_down)
    x = A_x
    mod = (_silu(c) @ w_mod).reshape(c.shape[0], 6, 1, -1)
    sa, ca, ga, sb, cb, gb = (mod[:, 0].clone(), mod[:, 1].clone(), mod[:, 2].clone(), mod[:, 3].clone(), mod[:, 4].clone(), mod[:, 5].clone())
    h = _layernorm(x, axis=-1) * (1 + ca) + sa
    x = x + ga * _A_ref(h, A_wqkv, A_wo)
    h = _layernorm(x, axis=-1) * (1 + cb) + sb
    x = x + gb * _B_ref(h, B_w_gate, B_w_up, B_w_down)
    return x
```

```python
import re

TRANS = ("v_exp_f32","v_log_f32","v_rcp_f32","v_rsq_f32","v_sqrt_f32","v_sin_f32","v_cos_f32","v_exp_f16","v_rcp_iflag_f32")

def _regs(tok):
    tok = tok.strip()
    neg = tok.lstrip('-')
    if neg.startswith('abs(') or neg.startswith('|'):
        neg = neg.replace('abs(','').replace(')','').replace('|','')
    tok = neg
    m = re.fullmatch(r'([vas])(\d+)', tok)
    if m: return [(m.group(1), int(m.group(2)))]
    m = re.fullmatch(r'([vas])\[(\d+):(\d+)\]', tok)
    if m: return [(m.group(1), i) for i in range(int(m.group(2)), int(m.group(3))+1)]
    if tok == 'vcc': return [('s',106),('s',107)]
    if tok == 'vcc_lo': return [('s',106)]
    if tok == 'vcc_hi': return [('s',107)]
    if tok == 'exec': return [('s',126),('s',127)]
    if tok == 'exec_lo': return [('s',126)]
    if tok == 'exec_hi': return [('s',127)]
    if tok == 'm0': return [('s',124)]
    return []

class Ins:
    __slots__=('text','op','ops','kind','wr','rd','srcc','passes','dpp','lds','wide_store','data','ws')
    def __init__(self, text):
        self.text = text
        t = text.split(';')[0].strip()
        parts = t.split(None,1)
        op = parts[0]
        self.op = op
        rest = parts[1] if len(parts)>1 else ''
        ops=[]; cur=''; depth=0
        for ch in rest:
            if ch=='[': depth+=1
            if ch==']': depth-=1
            if ch==',' and depth==0: ops.append(cur.strip()); cur=''
            else: cur+=ch
        if cur.strip(): ops.append(cur.strip())
        mods=''
        if ops:
            l = ops[-1].split(None,1)
            ops[-1]=l[0]
            if len(l)>1: mods=l[1]
        self.ops=ops
        self.dpp = ('row_' in mods or 'quad_perm' in mods or op.endswith('_dpp') or 'wave_' in mods)
        self.lds = (' lds' in (' '+mods+' ')) or op.startswith('global_load_lds')
        self.wr=set(); self.rd=set(); self.srcc=set(); self.passes=0; self.wide_store=False; self.data=set()
        self.ws = 1
        base = op.replace('_e32','').replace('_e64','').replace('_dpp','').replace('_sdwa','')
        R=lambda i: _regs(ops[i]) if i < len(ops) else []
        if op.startswith('v_mfma') or op.startswith('v_smfmac'):
            self.kind='mfma'
            self.passes = 8 if '32x32' in op else 4
            self.wr.update(R(0)); self.rd.update(R(1)+R(2)+R(3)); self.srcc.update(R(3))
        elif op.startswith('v_'):
            self.kind='valu'
            if base in TRANS: self.kind='trans'
            if base.startswith('v_cmpx'):
                self.wr.update(R(0)+_regs('exec')); [self.rd.update(R(i)) for i in range(1,len(ops))]
            elif base.startswith('v_cmp'):
                self.wr.update(R(0)); [self.rd.update(R(i)) for i in range(1,len(ops))]
            elif base in ('v_add_co_u32','v_sub_co_u32','v_subrev_co_u32','v_addc_co_u32','v_subb_co_u32','v_div_scale_f32','v_mad_u64_u32'):
                self.wr.update(R(0)+R(1)); [self.rd.update(R(i)) for i in range(2,len(ops))]
            elif base.startswith('v_permlane') and 'swap' in base:
                self.kind='permlane'
                self.wr.update(R(0)+R(1)); self.rd.update(R(0)+R(1))
            elif base in ('v_readfirstlane_b32','v_readlane_b32'):
                self.kind='readlane'
                self.wr.update(R(0)); [self.rd.update(R(i)) for i in range(1,len(ops))]
            elif base=='v_nop':
                pass
            else:
                self.wr.update(R(0)); [self.rd.update(R(i)) for i in range(1,len(ops))]
                if base in ('v_fmac_f32','v_dot2c_f32_bf16','v_writelane_b32','v_pk_fmac_f16') or 'UNUSED_PRESERVE' in mods or self.dpp:
                    self.rd.update(R(0))
                if base=='v_cndmask_b32' and len(ops)==3: self.rd.update(_regs('vcc'))
                if base=='v_div_fmas_f32': self.rd.update(_regs('vcc'))
        elif op.startswith('ds_'):
            self.kind='ds'
            if op.startswith('ds_read') or op.startswith('ds_bpermute') or op.startswith('ds_permute') or op.startswith('ds_swizzle') or '_rtn' in op:
                self.wr.update(R(0)); [self.rd.update(R(i)) for i in range(1,len(ops))]
            else:
                [self.rd.update(R(i)) for i in range(len(ops))]
        elif op.startswith('buffer_') or op.startswith('global_') or op.startswith('flat_'):
            self.kind='vmem'
            if op in ('buffer_wbl2','buffer_inv'):
                pass
            elif 'load' in op and not self.lds:
                self.wr.update(R(0)); [self.rd.update(R(i)) for i in range(1,len(ops))]
            elif 'atomic' in op and ' sc0' in (' '+mods):
                if op.startswith('global_'):
                    self.wr.update(R(0)); [self.rd.update(R(i)) for i in range(1,len(ops))]
                else:
                    self.wr.update(R(0)); [self.rd.update(R(i)) for i in range(len(ops))]
            else:
                [self.rd.update(R(i)) for i in range(len(ops))]
                if self.lds: self.rd.update(_regs('m0'))
                if 'store' in op and ('x3' in op or 'x4' in op):
                    self.wide_store=True
                    self.data=set(R(0) if op.startswith('buffer_') else R(1))
        elif op.startswith('s_'):
            self.kind='salu'
            if op=='s_nop': self.ws=int(ops[0],0)+1; self.kind='nop'
            elif op.startswith('s_load') or op.startswith('s_buffer_load') or op in ('s_memtime','s_memrealtime'):
                self.kind='smem'; self.wr.update(R(0)); [self.rd.update(R(i)) for i in range(1,len(ops))]
            elif op.startswith('s_cmp') or op.startswith('s_bitcmp') or op.startswith('s_cbranch') or op in ('s_branch','s_barrier','s_waitcnt','s_endpgm','s_sleep','s_setprio','s_setpc_b64'):
                [self.rd.update(R(i)) for i in range(len(ops))]
            else:
                self.wr.update(R(0)); [self.rd.update(R(i)) for i in range(1,len(ops))]
                if 'saveexec' in op: self.wr.update(_regs('exec')); self.rd.update(_regs('exec'))
        else:
            raise ValueError("unknown instr: "+text)

def isvalu(i): return i.kind in ('valu','trans','permlane','readlane')
def vg(s): return {r for r in s if r[0] in 'va'}
def sg(s): return {r for r in s if r[0]=='s'}
EXEC={('s',126),('s',127)}

def need(p, c):
    n=0
    if isvalu(p):
        pw_v=vg(p.wr); pw_s=sg(p.wr)
        if c.kind=='mfma' and pw_v & c.rd: n=max(n,2)
        if c.kind=='mfma' and pw_s & EXEC: n=max(n,4)
        if c.kind=='permlane' and pw_v & c.rd: n=max(n,2)
        if c.kind=='readlane' and pw_v & c.rd: n=max(n,1)
        if isvalu(c) and c.dpp and pw_v & c.rd: n=max(n,2)
        if isvalu(c) and c.dpp and pw_s & EXEC: n=max(n,5)
        if p.kind=='trans' and (isvalu(c) or c.kind=='mfma') and pw_v & c.rd: n=max(n,1)
        if c.kind=='vmem' and pw_s & c.rd: n=max(n,5)
        if isvalu(c) and pw_s & c.rd: n=max(n,2)
        if c.kind=='readlane' and pw_s & (c.rd|EXEC) and pw_s & EXEC: n=max(n,4)
        if c.kind=='readlane' and (pw_s & c.rd): n=max(n,4)
        if c.kind=='permlane' and pw_s & EXEC: n=max(n,4)
        if 'sdwa' in p.op or 'dst_sel' in p.text or ('op_sel' in p.text and not p.op.startswith('v_pk') and not p.op.startswith('v_dot')):
            if isvalu(c) and pw_v & (c.rd|c.wr): n=max(n,1)
        if c.kind in('salu','smem') and pw_s & c.rd: n=max(n,1)
    if p.op.startswith('v_dot') and (isvalu(c) or c.kind in('vmem','ds','mfma')):
        if vg(p.wr) & (c.rd|c.wr):
            same = (c.op==p.op)
            if same:
                srcab=set()
                for t in c.ops[1:3]: srcab.update(_regs(t))
                if vg(p.wr)&srcab: n=max(n,3)
            else: n=max(n,3)
    if p.kind=='mfma':
        P=p.passes
        if c.kind=='mfma':
            ab = c.rd - c.srcc
            ab = set(_regs(c.ops[1])+_regs(c.ops[2]))
            if p.wr & ab: n=max(n, {4:8,8:12}[P])
            if p.wr & c.srcc:
                if p.wr==c.srcc and p.passes==c.passes: pass
                else: n=max(n,{4:6,8:10}[P])
            elif p.wr & c.wr and not (p.wr==c.wr):
                n=max(n,{4:6,8:10}[P])
        elif isvalu(c) or c.kind in ('vmem','ds'):
            if p.wr & (c.rd|c.wr): n=max(n,{4:8,8:12}[P])
            if isvalu(c) and p.srcc & c.wr: n=max(n,{4:3,8:7}[P])
            if c.kind in ('vmem','ds') and p.srcc & c.wr: n=max(n,{4:3,8:7}[P])
    if p.kind=='vmem' and p.wide_store:
        if p.data & c.wr and (isvalu(c) or c.kind=='mfma'): n=max(n,2)
        elif p.data & c.wr: n=max(n,1)
    if p.kind=='ds' and ('b128' in p.op or 'b96' in p.op) and 'write' in p.op:
        if p.rd & vg(c.wr) and isvalu(c): n=max(n,1)
    if p.kind=='salu' and ('s',124) in p.wr and ((c.kind=='vmem' and c.lds) or 'addtid' in c.op): n=max(n,1)
    if p.kind=='salu' and (p.wr & EXEC) and isvalu(c) and c.dpp: n=max(n,0)
    return n

class Asm:
    def __init__(self):
        self.items=[]
    def __call__(self, text):
        for ln in text.strip('\n').split('\n'):
            s=ln.strip()
            if not s or s.startswith(';') or s.startswith('//'):
                continue
            if s.endswith(':'): self.items.append(('l',s[:-1]))
            elif s.startswith('.'): self.items.append(('r',s))
            else: self.items.append(('i',Ins(s)))
    def label(self,l): self.items.append(('l',l))
    def raw(self,s): self.items.append(('r',s))
    def finish(self, verbose=False):
        out=[]; hist=[]
        W=24
        def req(hist,c):
            d=0; n=0
            for p in reversed(hist[-W:]):
                k=need(p,c)
                if k>d: n=max(n,k-d)
                d+=p.ws
                if d>=20: break
            return n
        nins=0
        for kind,x in self.items:
            if kind=='i':
                n=req(hist,x)
                while n>0:
                    k=min(n,16)
                    nop=Ins(f"s_nop {k-1}"); out.append(('i',nop)); hist.append(nop); n-=k; nins+=1
                out.append(('i',x)); hist.append(x)
                if x.op in ('s_branch','s_endpgm','s_setpc_b64'): hist=[]
            else:
                out.append((kind,x))
        labels={x:i for i,(k,x) in enumerate(out) if k=='l'}
        for i,(k,x) in enumerate(out):
            if k=='i' and (x.op.startswith('s_cbranch') or x.op=='s_branch'):
                tgt=x.ops[0]
                if tgt not in labels: continue
                pre=[y for kk,y in out[max(0,i-40):i+1] if kk=='i']
                h=list(pre)
                cnt=0
                for kk,y in out[labels[tgt]:labels[tgt]+60]:
                    if kk!='i': continue
                    d=0
                    for p in reversed(h[-W:]):
                        if p in pre and need(p,y)>d:
                            raise RuntimeError(f"hazard across branch to {tgt}: '{p.text}' -> '{y.text}' need {need(p,y)} have {d}")
                        d+=p.ws
                        if d>=20: break
                    h.append(y); cnt+=1
                    if y.op in ('s_branch','s_endpgm') or cnt>22: break
        txt=[]
        for k,x in out:
            if k=='i': txt.append('  '+x.text)
            elif k=='l': txt.append(x+':')
            else: txt.append(x)
        return '\n'.join(txt)+'\n'

import os
def kd(name, vgpr, agpr=0, sgpr=96):
    if int(os.environ.get('PROF','0')): vgpr=max(vgpr,246)
    acc=(vgpr+3)//4*4
    nfv = acc+agpr if agpr else vgpr
    return f""".section .rodata,"a"
.p2align 6
.amdhsa_kernel {name}
  .amdhsa_next_free_vgpr {nfv}
  .amdhsa_next_free_sgpr {sgpr}
  .amdhsa_accum_offset {acc}
  .amdhsa_group_segment_fixed_size 0
  .amdhsa_kernarg_size 96
  .amdhsa_user_sgpr_count 2
  .amdhsa_user_sgpr_kernarg_segment_ptr 1
  .amdhsa_system_sgpr_workgroup_id_x 1
.end_amdhsa_kernel
.text
"""
def head(name):
    return f""".globl {name}
.p2align 8
.type {name},@function
{name}:
"""
```

```python
from asmlib import *
from gen import *

MF="v_mfma_f32_32x32x16_bf16"
def R(b,n=4,c='v'): return f"{c}[{b}:{b+n-1}]"

def common(a, ngrid, end):
    a(f"""
    s_cmp_ge_u32 s2, {ngrid}
    s_cbranch_scc1 {end}
    s_load_dwordx2 s[32:33], s[0:1], {KA_WS}
    v_and_b32 v1, 63, v0
    v_lshrrev_b32 v2, 6, v0
    v_lshlrev_b32 v3, 4, v1                 ; lane*16
    v_readfirstlane_b32 s24, v2             ; wave
    """)

def k_qkv():
    a=Asm()
    common(a,256,"A_end")
    ACC=16; T=64; WB=176
    a(f"""
    s_and_b32 s25, s2, 7
    s_lshl_b32 s25, s25, 1
    s_bfe_u32 s26, s2, 0x10003
    s_add_u32 s25, s25, s26                 ; h
    s_lshr_b32 s26, s2, 4                   ; rb
    s_lshl_b32 s26, s26, 2
    s_add_u32 s26, s26, s24                 ; tt
    s_mul_i32 s27, s26, {28*KB}
    s_add_u32 s27, s27, {WS_XH}             ; T base
    s_mul_i32 s28, s25, {87*KB}
    s_add_u32 s28, s28, {WS_WQKV}           ; W base
    s_lshl_b32 s29, s24, 11                 ; 2w KB
    s_waitcnt lgkmcnt(0)
    """)
    srd(a,20,32,33,WS_SIZE)
    def dma(ldsoff_expr_sreg, offs):
        a("s_mov_b32 m0, s30\ns_add_u32 s31, s28, s30")
        for o in offs:
            a(f"buffer_load_dwordx4 v3, s[20:23], s31 offen offset:{o} lds")
    for c in range(3):
        for p in range(3):
            a(f"s_add_u32 s30, s29, {(p*29+8*c)*KB}")
            dma(None,(0,1024))
        for g in range(2):
            a(f"s_add_u32 s31, s27, {(8*c+4*g)*KB}")
            for i in range(4):
                s=8*c+4*g+i
                a(f"buffer_load_dwordx4 {R(T+4*s)}, v3, s[20:23], s31 offen offset:{i*1024}")
    a("s_lshl_b32 s29, s24, 10")
    for p in range(3):
        a(f"s_add_u32 s30, s29, {(p*29+24)*KB}")
        dma(None,(0,))
    a(f"s_min_u32 s30, s24, 2\ns_mul_i32 s30, s30, {29*KB}\ns_add_u32 s30, s30, {28*KB}")
    dma(None,(0,))
    a(f"s_add_u32 s31, s27, {24*KB}")
    for i in range(4):
        a(f"buffer_load_dwordx4 {R(T+4*(24+i))}, v3, s[20:23], s31 offen offset:{i*1024}")
    ONES=200
    for i in range(4): a(f"v_mov_b32 v{ONES+i}, 0x3f803f80")
    a(f"v_add_u32 v4, {58*KB}, v3")
    def rd(s,buf):
        for p in range(3):
            if p<2: a(f"ds_read_b128 {R(WB+12*buf+4*p)}, v3 offset:{(p*29+s)*KB}")
            else:   a(f"ds_read_b128 {R(WB+12*buf+4*p)}, v4 offset:{s*KB}")
    chunks=[(range(0,8),36),(range(8,16),22),(range(16,24),8),(range(24,29),0)]
    for steps,vm in chunks:
        a(f"s_waitcnt vmcnt({vm})\ns_barrier")
        steps=list(steps)
        rd(steps[0],steps[0]%2)
        for s in steps:
            last = (s==steps[-1])
            if not last: rd(s+1,(s+1)%2)
            a(f"s_waitcnt lgkmcnt({0 if last else 3})")
            t = R(T+4*s) if s<28 else R(ONES)
            for p in range(3):
                w=R(WB+12*(s%2)+4*p); d=R(ACC+16*p,16); c = "0" if s==0 else d
                if p<2: a(f"{MF} {d}, {w}, {t}, {c}")
                else:   a(f"{MF} {d}, {t}, {w}, {c}")
    O=64
    a(f"""
    s_lshl_b32 s27, s25, 6
    s_add_u32 s27, s27, s26                 ; h*64+tt
    s_lshl_b32 s28, s27, 11
    s_add_u32 s28, s28, {WS_Q}
    s_lshl_b32 s29, s27, 12
    s_add_u32 s29, s29, {WS_KV}
    v_and_b32 v5, 31, v1
    v_cmp_eq_u32 vcc, 28, v5
    v_mov_b32 v6, 0x3f803f80
    v_cndmask_b32 v6, 0, v6, vcc
    """)
    for p in range(3):
        for q in range(8):
            a(f"v_cvt_pk_bf16_f32 v{O+8*p+q}, v{ACC+16*p+2*q}, v{ACC+16*p+2*q+1}")
    a(f"""
    s_mov_b32 exec_lo, 0
    v_mov_b32 v{O+6}, 0
    v_mov_b32 v{O+7}, 0
    v_mov_b32 v{O+8+6}, 0x3f803f80
    v_mov_b32 v{O+8+7}, 0x3f80
    s_mov_b32 exec_lo, 0xf0000000
    s_mov_b32 exec_hi, 0xf0000000
    """)
    for q in range(8): a(f"v_mov_b32 v{O+16+q}, v6")
    a("s_mov_b64 exec, -1")
    a(f"""
    buffer_store_dwordx4 {R(O)}, v3, s[20:23], s28 offen
    buffer_store_dwordx4 {R(O+4)}, v3, s[20:23], s28 offen offset:1024
    buffer_store_dwordx4 {R(O+8)}, v3, s[20:23], s29 offen
    buffer_store_dwordx4 {R(O+12)}, v3, s[20:23], s29 offen offset:1024
    buffer_store_dwordx4 {R(O+16)}, v3, s[20:23], s29 offen offset:2048
    buffer_store_dwordx4 {R(O+20)}, v3, s[20:23], s29 offen offset:3072
A_end:
    s_endpgm
    """)
    return head("qkv_kernel")+a.finish()+kd("qkv_kernel",204)


def reduce4(a, acc_cls, ACC, RD, vlane16=3, t=4):
    for i in range(1,4):
        a(f"v_add_u32 v{t}, s{39+i}, v{vlane16}")
        for q in range(4):
            a(f"ds_write_b128 v{t}, {R(ACC+16*i+4*q,4,acc_cls)} offset:{q*1024}")
    a(f"v_add_u32 v{t}, s43, v{vlane16}")
    if acc_cls=='a':
        for r in range(16): a(f"v_accvgpr_read_b32 v{RD+48+r}, a{ACC+r}")
    a("s_waitcnt lgkmcnt(0)\ns_barrier")
    for i in range(3):
        for q in range(4):
            a(f"ds_read_b128 {R(RD+16*i+4*q)}, v{t} offset:{i*4096+q*1024}")
    for i in range(3):
        for q in range(4):
            a(f"s_waitcnt lgkmcnt({11-4*i-q})")
            for e in range(4):
                r=4*q+e
                src = f"v{ACC+r}" if (acc_cls=='v' and i==0) else f"v{RD+48+r}"
                a(f"v_add_f32 v{RD+48+r}, {src}, v{RD+16*i+r}")

def k_attn():
    a=Asm()
    common(a,256,"B_end")
    Q=16; S=48; P=80; KV=96; TMP=160
    a(f"""
    s_and_b32 s25, s2, 7
    s_lshl_b32 s25, s25, 1
    s_bfe_u32 s26, s2, 0x10003
    s_add_u32 s25, s25, s26                 ; h
    s_lshr_b32 s26, s2, 4                   ; qb
    s_lshl_b32 s27, s25, 6                  ; h*64
    s_lshl_b32 s28, s26, 2
    s_add_u32 s28, s28, s27                 ; h*64+qb*4
    s_lshl_b32 s28, s28, 11
    s_add_u32 s28, s28, {WS_Q}              ; Q base
    s_lshl_b32 s29, s27, 12
    s_add_u32 s29, s29, {WS_KV}
    s_lshl_b32 s30, s24, 16
    s_add_u32 s30, s30, s29
    s_add_u32 s38, s30, 65536               ; limit
    s_mov_b32 s34, 0xffff0000
    s_waitcnt lgkmcnt(0)
    """)
    srd(a,20,32,33,WS_SIZE)
    for i in range(4):
        a(f"s_add_u32 s31, s24, {i}\ns_and_b32 s31, s31, 3")
        if i>0: a(f"s_mul_i32 s{39+i}, s31, 3\ns_add_u32 s{39+i}, s{39+i}, {i-1}\ns_lshl_b32 s{39+i}, s{39+i}, 12")
        a(f"s_lshl_b32 s31, s31, 11\ns_add_u32 s31, s31, s28")
        a(f"buffer_load_dwordx4 {R(Q+8*i)}, v3, s[20:23], s31 offen")
        a(f"buffer_load_dwordx4 {R(Q+8*i+4)}, v3, s[20:23], s31 offen offset:1024")
    a("s_mul_i32 s43, s24, 12288")
    a(f"buffer_load_dwordx4 {R(TMP)}, v3, s[20:23], s29 offen")
    a(f"buffer_load_dwordx4 {R(TMP+4)}, v3, s[20:23], s29 offen offset:1024")
    def ldK(buf,sreg):
        a(f"buffer_load_dwordx4 {R(KV+16*buf)}, v3, s[20:23], s{sreg} offen")
        a(f"buffer_load_dwordx4 {R(KV+16*buf+4)}, v3, s[20:23], s{sreg} offen offset:1024")
    def ldV(buf,sreg):
        a(f"buffer_load_dwordx4 {R(KV+16*buf+8)}, v3, s[20:23], s{sreg} offen offset:2048")
        a(f"buffer_load_dwordx4 {R(KV+16*buf+12)}, v3, s[20:23], s{sreg} offen offset:3072")
    a("s_mov_b32 s31, s30")
    for b in range(4):
        ldK(b,31)
        if b<3:
            ldV(b,31); a("s_add_u32 s31, s31, 4096")
    a("s_mov_b32 s36, s31")
    for i in range(64): a(f"v_accvgpr_write_b32 a{i}, 0")
    for i in range(8): a(f"v_mov_b32 v{P+8+i}, 0\nv_mov_b32 v{KV+48+8+i}, 0")
    a("s_waitcnt vmcnt(14)")
    SM=[S,S+16,TMP+16,TMP+32]
    for i in range(4):
        a(f"{MF} {R(SM[i],16)}, {R(TMP)}, {R(Q+8*i)}, 0")
        a(f"{MF} {R(SM[i],16)}, {R(TMP+4)}, {R(Q+8*i+4)}, {R(SM[i],16)}")
    for i in range(4):
        s=SM[i]; m=TMP+8+i
        a(f"v_max3_f32 v{m}, v{s}, v{s+1}, v{s+2}")
        for k in range(3,15,2): a(f"v_max3_f32 v{m}, v{m}, v{s+k}, v{s+k+1}")
        a(f"v_max_f32 v{m}, v{m}, v{s+15}")
        a(f"v_mov_b32 v{TMP+12}, v{m}")
        a(f"v_permlane32_swap_b32 v{m}, v{TMP+12}")
        a(f"v_max_f32 v{m}, v{m}, v{TMP+12}")
    def set_m(i,m,t):
        a(f"""
        v_cvt_pk_bf16_f32 v{t}, -v{m}, -v{m}
        v_and_b32 v{t}, s34, v{t}
        v_sub_f32 v{t+1}, -v{m}, v{t}
        v_cvt_pk_bf16_f32 v{t+2}, v{t+1}, v{t+1}
        v_and_b32 v{t+2}, s34, v{t+2}
        v_sub_f32 v{t+1}, v{t+1}, v{t+2}
        v_cvt_pk_bf16_f32 v{Q+8*i+6}, v{t}, v{t+2}
        v_cvt_pk_bf16_f32 v{Q+8*i+7}, v{t+1}, 0
        """)
    a("s_mov_b32 exec_lo, 0")
    for i in range(4): set_m(i,TMP+8+i,TMP+12)
    a("s_mov_b64 exec, -1")
    def qk(buf,qi,sb,half):
        d=R(S+16*sb,16)
        if half==0: return f"{MF} {d}, {R(KV+16*buf)}, {R(Q+8*qi)}, 0"
        return f"{MF} {d}, {R(KV+16*buf+4)}, {R(Q+8*qi+4)}, {d}"
    def pv(buf,qi,pb,half):
        d=R(16*qi,16,'a')
        return f"{MF} {d}, {R(KV+16*buf+8+4*half)}, {R(P+8*pb+4*half)}, {d}"
    a("s_waitcnt vmcnt(12)")
    a(qk(0,0,0,0)); a(qk(0,0,0,1))
    a("s_mov_b32 s35, 0\ns_nop 7\ns_nop 3")
    a("B_loop:")
    for kt in range(4):
        for qi in range(4):
            u=kt*4+qi; sb=u%2; pb=u%2
            nk,nq=((kt+(qi+1)//4)%4,(qi+1)%4)
            pk,pq=((kt+(qi-1)//4)%4,(qi-1)%4)
            ms=[qk(nk,nq,1-sb,0),qk(nk,nq,1-sb,1),pv(pk,pq,1-pb,0),pv(pk,pq,1-pb,1)]
            for g in range(4):
                if g==0 and qi==3: a("s_waitcnt vmcnt(10)")
                if g==2 and qi==1: a("s_waitcnt vmcnt(10)")
                a(ms[g])
                if g==0 and qi==3: ldK(kt,36)
                if g==2 and qi==1: ldV((kt-1)%4,36)
                if g==0 and qi==2:
                    a("s_add_u32 s31, s31, 4096\ns_cmp_lt_u32 s31, s38\ns_cselect_b32 s36, s31, 0x80000000")
                b=S+16*sb+4*g
                for e in range(4): a(f"v_exp_f32 v{b+e}, v{b+e}")
                a(f"v_cvt_pk_bf16_f32 v{P+8*pb+2*g}, v{b}, v{b+1}")
                a(f"v_cvt_pk_bf16_f32 v{P+8*pb+2*g+1}, v{b+2}, v{b+3}")
    a("s_add_u32 s35, s35, 1\ns_cmp_lt_u32 s35, 4\ns_cbranch_scc1 B_loop")
    a(pv(3,3,1,0)); a(pv(3,3,1,1))
    RD=96
    a("s_waitcnt vmcnt(0)")
    reduce4(a,'a',0,RD)
    O=RD+48
    a(f"""
    v_mov_b32 v5, v{O+12}
    v_mov_b32 v6, v{O+12}
    v_permlane32_swap_b32 v6, v5
    v_rcp_f32 v5, v5
    s_lshl_b32 s26, s26, 2
    s_add_u32 s26, s26, s24
    s_lshl_b32 s26, s26, 5
    s_lshl_b32 s25, s25, 1
    s_add_u32 s26, s26, s25
    s_lshl_b32 s26, s26, 10
    s_add_u32 s26, s26, {WS_O}
    """)
    for r in range(16): a(f"v_mul_f32 v{O+r}, v{O+r}, v5")
    for q in range(8): a(f"v_cvt_pk_bf16_f32 v{16+q}, v{O+2*q}, v{O+2*q+1}")
    a(f"""
    buffer_store_dwordx4 {R(16)}, v3, s[20:23], s26 offen
    buffer_store_dwordx4 {R(20)}, v3, s[20:23], s26 offen offset:1024
B_end:
    s_endpgm
    """)
    return head("attn_kernel")+a.finish()+kd("attn_kernel",208,64)

def tile64_ids(a):
    a(f"""
    s_and_b32 s25, s2, 7
    s_lshr_b32 s27, s2, 3
    s_mul_i32 s28, s27, 9363
    s_lshr_b32 s28, s28, 16                 ; j/7
    s_mul_i32 s26, s28, 7
    s_sub_u32 s26, s27, s26                 ; nb
    s_lshl_b32 s28, s28, 3
    s_add_u32 s25, s25, s28                 ; tb
    s_lshr_b32 s27, s24, 1                  ; w1
    s_and_b32 s28, s24, 1                   ; w0
    s_lshl_b32 s25, s25, 1
    s_lshl_b32 s26, s26, 1
    s_add_u32 s44, s25, s27
    s_xor_b32 s45, s44, 1
    s_add_u32 s46, s26, s28
    s_xor_b32 s47, s46, 1
    s_mul_i32 s43, s24, 12288
    """)
    for i in range(1,4):
        a(f"s_xor_b32 s{39+i}, s24, {i}\ns_mul_i32 s{39+i}, s{39+i}, 3\ns_add_u32 s{39+i}, s{39+i}, {i-1}\ns_lshl_b32 s{39+i}, s{39+i}, 12")

def k_wo():
    a=Asm()
    common(a,224,"C_end")
    a(f"s_load_dwordx2 s[4:5], s[0:1], {KA_X}")
    tile64_ids(a)
    ACC=16; T=80; W=144; XR=208; GA=216
    a(f"""
    s_lshl_b32 s29, s24, 13
    s_lshl_b32 s48, s44, 15
    s_lshl_b32 s49, s45, 15
    s_lshl_b32 s50, s46, 15
    s_lshl_b32 s51, s47, 15
    s_add_u32 s30, s29, {WS_O}
    s_add_u32 s48, s48, s30
    s_add_u32 s49, s49, s30
    s_add_u32 s30, s29, {WS_WO}
    s_add_u32 s50, s50, s30
    s_add_u32 s51, s51, s30
    s_waitcnt lgkmcnt(0)
    """)
    srd(a,20,32,33,WS_SIZE)
    srd(a,16,4,5,2048*896)
    for g in range(2):
        for i in range(4):
            s=4*g+i
            for (base,sr) in ((W,50),(T,48),(W+32,51),(T+32,49)):
                a(f"buffer_load_dwordx4 {R(base+4*s)}, v3, s[20:23], s{sr} offen offset:{i*1024}")
        if g==0:
            for sr in (48,49,50,51): a(f"s_add_u32 s{sr}, s{sr}, 4096")
    a(f"""
    v_and_b32 v5, 31, v1
    v_lshrrev_b32 v6, 5, v1
    s_lshl_b32 s29, s44, 5
    v_add_u32 v5, s29, v5
    v_mul_u32_u24 v5, 896, v5
    v_lshl_add_u32 v5, v6, 3, v5
    s_lshl_b32 s29, s46, 6
    v_lshlrev_b32 v6, 4, v6
    s_lshl_b32 s30, s46, 7
    s_add_u32 s30, s30, {WS_MOD+2*1792}
    """)
    for q in range(4):
        a(f"buffer_load_dwordx2 {R(XR+2*q,2)}, v5, s[16:19], s29 offen offset:{16*q}")
        a(f"buffer_load_dwordx4 {R(GA+4*q)}, v6, s[20:23], s30 offen offset:{32*q}")
    for s in range(8):
        a(f"s_waitcnt vmcnt({8+4*(7-s)})")
        for i in range(4):
            ta,wb=i>>1,i&1
            d=R(ACC+16*i,16)
            a(f"{MF} {d}, {R(W+32*wb+4*s)}, {R(T+32*ta+4*s)}, {'0' if s==0 else d}")
    RD=80
    reduce4(a,'v',ACC,RD)
    O=RD+48
    a(f"""
    s_mov_b32 s34, 0xffff0000
    s_mul_i32 s29, s44, {28*KB}
    s_lshl_b32 s30, s46, 11
    s_add_u32 s29, s29, s30
    s_add_u32 s29, s29, {WS_X1}
    s_waitcnt vmcnt(0)
    """)
    for q in range(8):
        a(f"v_lshlrev_b32 v{16+2*q}, 16, v{XR+q}\nv_and_b32 v{17+2*q}, s34, v{XR+q}")
    for r in range(16): a(f"v_fmac_f32 v{16+r}, v{O+r}, v{GA+r}")
    for q in range(8): a(f"v_cvt_pk_bf16_f32 v{32+q}, v{16+2*q}, v{17+2*q}")
    a(f"""
    buffer_store_dwordx4 {R(32)}, v3, s[20:23], s29 offen
    buffer_store_dwordx4 {R(36)}, v3, s[20:23], s29 offen offset:1024
C_end:
    s_endpgm
    """)
    return head("wo_kernel")+a.finish()+kd("wo_kernel",232)

def k_gu():
    a=Asm()
    common(a,256,"D_end")
    T=64; ACC=16; WB=176; NB=8; EXT=208; TM=216; ST=8
    C1=-2*math.sqrt(2/math.pi)*LOG2E; C2=C1*0.044715
    a(f"""
    s_and_b32 s25, s2, 7
    s_lshr_b32 s27, s2, 3
    s_and_b32 s26, s27, 7
    s_lshl_b32 s26, s26, 1
    s_and_b32 s28, s25, 1
    s_add_u32 s26, s26, s28                 ; rb
    s_lshr_b32 s27, s27, 3
    s_lshl_b32 s27, s27, 2
    s_lshr_b32 s25, s25, 1
    s_add_u32 s25, s25, s27                 ; fb
    s_lshl_b32 s26, s26, 2
    s_add_u32 s26, s26, s24                 ; tt
    s_mul_i32 s27, s26, {28*KB}
    s_add_u32 s27, s27, {WS_X1}             ; T base
    s_mul_i32 s28, s25, {7*30*KB}
    s_add_u32 s28, s28, {WS_WGU}
    s_lshl_b32 s29, s24, 13                 ; 8w KB
    s_add_u32 s28, s28, s29
    s_cmp_eq_u32 s24, 3
    s_movk_i32 s37, 4096
    s_cmovk_i32 s37, 2048
    s_mul_i32 s38, s26, {112*KB}
    s_mul_i32 s39, s25, {7*KB}
    s_add_u32 s38, s38, s39
    s_add_u32 s38, s38, {WS_HH}
    s_mov_b32 s34, 0xffff0000
    s_mov_b32 s50, 0x3f803f80
    s_waitcnt lgkmcnt(0)
    """)
    srd(a,20,32,33,WS_SIZE)
    def dma(tile,slot):
        a(f"s_add_u32 s30, s29, {slot*30*KB}\ns_mov_b32 m0, s30\ns_add_u32 s31, s28, {tile*30*KB}")
        for i in range(4): a(f"buffer_load_dwordx4 v3, s[20:23], s31 offen offset:{i*1024} lds")
        a("s_add_u32 s30, s30, s37\ns_mov_b32 m0, s30\ns_add_u32 s31, s31, s37")
        for i in range(4): a(f"buffer_load_dwordx4 v3, s[20:23], s31 offen offset:{i*1024} lds")
    dma(0,0)
    for g in range(7):
        a(f"s_add_u32 s31, s27, {4*g*KB}")
        for i in range(4): a(f"buffer_load_dwordx4 {R(T+4*(4*g+i))}, v3, s[20:23], s31 offen offset:{i*1024}")
    dma(1,1); dma(2,2)
    for i in range(4): a(f"v_mov_b32 v{ST+i}, 0")
    PF=4
    def rd(s,base): a(f"ds_read_b128 {R(WB+4*(s%NB))}, v{base} offset:{s*KB}")
    def epi_ops(acc,dst_s):
        L=[]
        for r in range(8):
            g=acc+r; u=acc+8+r; t=TM+(r%2)*3
            L+= [f"v_mul_f32 v{t}, v{g}, v{g}",
                 f"v_fma_f32 v{t}, v{t}, v{ST+5}, v{ST+4}",
                 f"v_mul_f32 v{t}, v{t}, v{g}",
                 f"v_exp_f32 v{t}, v{t}",
                 f"v_mul_f32 v{t+1}, v{g}, v{u}",
                 f"v_fma_f32 v{t}, v{t}, v{ST+6}, v{ST+6}",
                 f"v_rcp_f32 v{t}, v{t}",
                 "NOP",
                 f"v_mul_f32 v{TM+8+r}, v{t+1}, v{t}"]
            if r%2==1: L.append(f"v_cvt_pk_bf16_f32 v{TM+16+r//2}, v{TM+8+r-1}, v{TM+8+r}")
        L=[x for x in L if x!="NOP"]
        L.append(f"buffer_store_dwordx4 {R(TM+16)}, v3, s[20:23], s38 offen")
        L.append("s_add_u32 s38, s38, 1024")
        return L
    a("s_waitcnt vmcnt(44)\ns_barrier")
    for s in range(PF): rd(s,3)
    for s in range(28):
        if s+PF<30: rd(s+PF,3)
        a(f"s_waitcnt vmcnt({16+27-s}) lgkmcnt({min(PF,29-s)})")
        d=R(ACC,16)
        a(f"{MF} {d}, {R(WB+4*(s%NB))}, {R(T+4*s)}, {'0' if s==0 else d}")
        for i in range(4):
            a(f"v_dot2c_f32_bf16 v{ST+i%2}, s50, v{T+4*s+i}")
            a(f"v_dot2c_f32_bf16 v{ST+2+i%2}, v{T+4*s+i}, v{T+4*s+i}")
    dma(3,3); dma(4,4)
    a(f"""
    v_add_f32 v{ST}, v{ST}, v{ST+1}
    v_add_f32 v{ST+2}, v{ST+2}, v{ST+3}
    v_mov_b32 v{ST+1}, v{ST}
    v_mov_b32 v{ST+3}, v{ST+2}
    v_permlane32_swap_b32 v{ST}, v{ST+1}
    v_permlane32_swap_b32 v{ST+2}, v{ST+3}
    v_add_f32 v{ST}, v{ST}, v{ST+1}
    v_add_f32 v{ST+2}, v{ST+2}, v{ST+3}
    v_mul_f32 v{ST}, {hx(f2u(1/448))}, v{ST}           ; mu
    v_mul_f32 v{ST+2}, {hx(f2u(1/448))}, v{ST+2}       ; E[x^2]
    v_fma_f32 v{ST+2}, -v{ST}, v{ST}, v{ST+2}          ; var
    v_max_f32 v{ST+2}, 0, v{ST+2}
    v_add_f32 v{ST+6}, {hx(f2u(1e-5))}, v{ST+2}
    v_rsq_f32 v{ST+3}, v{ST+6}                         ; r
    v_cvt_pk_bf16_f32 v{EXT+4}, -v{ST}, -v{ST}
    v_mul_f32 v{ST+1}, v{ST+6}, v{ST+3}                ; sigma
    v_mul_f32 v{ST+4}, {hx(f2u(C1))}, v{ST+3}
    v_cvt_pk_bf16_f32 v{EXT}, v{ST+1}, v{ST+1}
    v_mul_f32 v{ST+5}, v{ST+3}, v{ST+3}
    v_mul_f32 v{ST+5}, v{ST+5}, v{ST+3}
    v_mul_f32 v{ST+5}, {hx(f2u(C2))}, v{ST+5}
    v_mov_b32 v{EXT+1}, v{EXT}
    v_mov_b32 v{EXT+2}, v{EXT}
    v_mov_b32 v{EXT+3}, v{EXT}
    v_mov_b32 v{EXT+5}, v{EXT+4}
    v_mov_b32 v{EXT+6}, v{EXT+4}
    v_mov_b32 v{EXT+7}, v{EXT+4}
    s_waitcnt lgkmcnt(0)
    """)
    for s in (28,29):
        a(f"{MF} {R(ACC,16)}, {R(WB+4*(s%NB))}, {R(EXT+4*(s-28))}, {R(ACC,16)}")
    pend=[('d',1,8),('d',2,8),('d',3,8),('d',4,8)]
    for p in range(1,7):
        idx=[i for i,x in enumerate(pend) if x[0]=='d' and x[1]==p][0]
        younger=sum(x[2] for x in pend[idx+1:])
        pend=pend[idx+1:]
        a(f"s_waitcnt vmcnt({younger})\ns_barrier")
        slot=p%5
        a(f"v_add_u32 v4, {slot*30*KB}, v3")
        for s in range(PF): rd(s,4)
        if p+4<=6:
            dma(p+4,(p-1)%5); pend.append(('d',p+4,8))
        acc=ACC+16*(p%2); prev=ACC+16*((p-1)%2)
        E=epi_ops(prev,None); ne=len(E); done=0
        for s in range(30):
            if s+PF<30: rd(s+PF,4)
            a(f"s_waitcnt lgkmcnt({min(PF,29-s)})")
            d=R(acc,16); t=R(T+4*s) if s<28 else R(EXT+4*(s-28))
            a(f"{MF} {d}, {R(WB+4*(s%NB))}, {t}, {'0' if s==0 else d}")
            if s>=2:
                tgt=min(ne,(s-1)*3)
                while done<tgt: a(E[done]); done+=1
        while done<ne: a(E[done]); done+=1
        pend.append(('s',p,1))
    for x in epi_ops(ACC+16*(6%2),None): a(x)
    a("D_end:\ns_endpgm")
    return head("gu_kernel")+a.finish()+kd("gu_kernel",240)

def k_down():
    a=Asm()
    common(a,224,"E_end")
    a(f"s_load_dwordx2 s[4:5], s[0:1], {KA_OUT}")
    tile64_ids(a)
    ACC=16; B=80; XR=192; GB=200
    a(f"""
    s_mul_i32 s29, s24, {28*KB}
    s_mul_i32 s48, s44, {112*KB}
    s_mul_i32 s49, s45, {112*KB}
    s_mul_i32 s50, s46, {112*KB}
    s_mul_i32 s51, s47, {112*KB}
    s_add_u32 s30, s29, {WS_HH}
    s_add_u32 s48, s48, s30
    s_add_u32 s49, s49, s30
    s_add_u32 s30, s29, {WS_WD}
    s_add_u32 s50, s50, s30
    s_add_u32 s51, s51, s30
    s_mul_i32 s29, s44, {28*KB}
    s_lshl_b32 s30, s46, 11
    s_add_u32 s29, s29, s30
    s_add_u32 s29, s29, {WS_X1}
    s_lshl_b32 s30, s46, 7
    s_add_u32 s30, s30, {WS_MOD+3*1792}
    v_lshrrev_b32 v6, 5, v1
    v_lshlrev_b32 v7, 4, v6
    v_add_u32 v8, 4096, v3
    s_waitcnt lgkmcnt(0)
    """)
    srd(a,20,32,33,WS_SIZE)
    srd(a,16,4,5,2048*896)
    a(f"buffer_load_dwordx4 {R(XR)}, v3, s[20:23], s29 offen\nbuffer_load_dwordx4 {R(XR+4)}, v3, s[20:23], s29 offen offset:1024")
    for q in range(4): a(f"buffer_load_dwordx4 {R(GB+4*q)}, v7, s[20:23], s30 offen offset:{32*q}")
    def ld(j):
        va = 3 if j<4 else 8
        for i,sr in enumerate((50,48,51,49)):
            a(f"buffer_load_dwordx4 {R(B+16*j+4*i)}, v{va}, s[20:23], s{sr} offen offset:{(j%4)*1024}")
    for j in range(7): ld(j)
    for i in range(64): a(f"v_mov_b32 v{ACC+i}, 0")
    a("s_mov_b32 s35, 0")
    a("E_loop:")
    a("s_cmp_lt_u32 s35, 3\ns_mov_b32 s36, 0x40000000\ns_cmovk_i32 s36, 7168")
    for sr in (48,49,50,51): a(f"s_add_u32 s{sr}, s{sr}, s36")
    for j in range(7):
        a("s_waitcnt vmcnt(24)")
        for i in range(4):
            ta,wb=i>>1,i&1
            d=R(ACC+16*i,16)
            a(f"{MF} {d}, {R(B+16*j+8*wb)}, {R(B+16*j+8*ta+4)}, {d}")
        ld(j)
    a("s_add_u32 s35, s35, 1\ns_cmp_lt_u32 s35, 4\ns_cbranch_scc1 E_loop")
    a("s_waitcnt vmcnt(0)")
    RD=80
    reduce4(a,'v',ACC,RD)
    O=RD+48
    a(f"""
    s_mov_b32 s34, 0xffff0000
    v_and_b32 v5, 31, v1
    s_lshl_b32 s29, s44, 5
    v_add_u32 v5, s29, v5
    v_mul_u32_u24 v5, 896, v5
    v_lshl_add_u32 v5, v6, 3, v5
    s_lshl_b32 s29, s46, 6
    """)
    for q in range(8):
        a(f"v_lshlrev_b32 v{16+2*q}, 16, v{XR+q}\nv_and_b32 v{17+2*q}, s34, v{XR+q}")
    for r in range(16): a(f"v_fmac_f32 v{16+r}, v{O+r}, v{GB+r}")
    for q in range(8): a(f"v_cvt_pk_bf16_f32 v{32+q}, v{16+2*q}, v{17+2*q}")
    for q in range(4): a(f"buffer_store_dwordx2 {R(32+2*q,2)}, v5, s[16:19], s29 offen offset:{16*q}")
    a("E_end:\ns_endpgm")
    return head("down_kernel")+a.finish()+kd("down_kernel",216)

def kernels():
    return [("qkv_kernel",256,256,87*KB,k_qkv()),
            ("attn_kernel",256,256,48*KB,k_attn()),
            ("wo_kernel",224,256,48*KB,k_wo()),
            ("gu_kernel",256,256,150*KB,k_gu()),
            ("down_kernel",224,256,48*KB,k_down())]
```

```python
import sys, math
from asmlib import *

NAME="adaLN_cond__mha_block__glu_gated_geglu__prompt"
KA_X,KA_WQKV,KA_WO,KA_BX,KA_WG,KA_WU,KA_WD,KA_C,KA_WMOD,KA_OUT,KA_DBG,KA_WS = [8*i for i in range(12)]
KB=1024
WS_XH   = 0
WS_WQKV = WS_XH   + 64*28*KB
WS_MOD  = WS_WQKV + 48*29*KB
WS_Q    = WS_MOD  + 8*KB
WS_KV   = WS_Q    + 16*64*2*KB
WS_O    = WS_KV   + 16*64*4*KB
WS_WO   = WS_O    + 64*32*KB
WS_X1   = WS_WO   + 14*32*KB
WS_WGU  = WS_X1   + 64*28*KB
WS_HH   = WS_WGU  + 112*30*KB
WS_WD   = WS_HH   + 64*112*KB
WS_END  = WS_WD   + 14*112*KB
WS_SIZE = 268435456
LOG2E = 1.4426950408889634
import struct
def f2u(x): return struct.unpack('<I',struct.pack('<f',x))[0]
def hx(x): return hex(x & 0xffffffff)

def srd(a, d, lo, hi, size):
    a(f"s_mov_b32 s{d}, s{lo}\ns_mov_b32 s{d+1}, s{hi}\ns_mov_b32 s{d+2}, {hx(size)}\ns_mov_b32 s{d+3}, 0x20000")

def xpose_task(a, W, LO, F, S, OUT, dest, wsrd, smask, bias=None, cs=None, ones=None):
    if bias: a(f"v_mov_b32 v{bias[0]}, 0\nv_mov_b32 v{bias[1]}, 0")
    for i in range(16):
        a(f"v_lshlrev_b32 v{LO+i}, 16, v{W+i}")
        a(f"v_and_b32 v{W+i}, s{smask}, v{W+i}")
        if bias:
            a(f"v_fmac_f32 v{bias[0]}, v{LO+i}, v{S+i}")
            a(f"v_fmac_f32 v{bias[1]}, v{W+i}, v{S+i}")
        a(f"v_mul_f32 v{LO+i}, v{LO+i}, v{F+i}")
        a(f"v_mul_f32 v{W+i}, v{W+i}, v{F+i}")
    rows=[[0,2,8,10],[4,6,12,14]]
    for hfp in range(2):
        for col,src in enumerate((LO,W)):
            o=OUT+(hfp*2+col)*4
            for q,r in enumerate(rows[hfp]):
                a(f"v_cvt_pk_bf16_f32 v{o+q}, v{src+r}, v{src+r+1}")
            a(f"buffer_store_dwordx4 v[{o}:{o+3}], v{dest}, s[{wsrd}:{wsrd+3}], 0 offen offset:{hfp*512+col*16}")
    if cs:
        a(f"v_mov_b32 v{cs[0]}, 0\nv_mov_b32 v{cs[1]}, 0")
        for hfp in range(2):
            for q in range(4):
                for col in range(2):
                    o=OUT+(hfp*2+col)*4
                    a(f"v_dot2c_f32_bf16 v{cs[col]}, s{ones}, v{o+q}")

def half_sum_select(a, x0, x1, t0, t1):
    a(f"v_permlane32_swap_b32 v{x0}, v{x1}")
    a(f"v_add_f32 v{x0}, v{x0}, v{x1}")

def k_prep():
    a=Asm()
    a("""
    s_cmp_ge_u32 s2, 134
    s_cbranch_scc1 P_end
    s_load_dwordx4 s[4:7], s[0:1], 0        ; x, wqkv
    s_load_dwordx4 s[28:31], s[0:1], 56     ; c, w_mod
    s_load_dwordx2 s[32:33], s[0:1], 88     ; ws
    v_and_b32 v1, 63, v0
    v_lshrrev_b32 v2, 6, v0
    s_mov_b32 s34, 0xffff0000
    v_readfirstlane_b32 s24, v2             ; wave
    v_lshrrev_b32 v6, 5, v1                 ; hf
    s_waitcnt lgkmcnt(0)
    """)
    srd(a,20,32,33,WS_SIZE)
    a("s_cmp_ge_u32 s2, 70\ns_cbranch_scc1 P_ln")
    srd(a,8,30,31,448*2688*2)
    srd(a,12,28,29,896)
    srd(a,16,6,7,448*1344*2)
    a(f"""
    s_mul_i32 s35, s2, 43691
    s_lshr_b32 s35, s35, 17                 ; s35 = id/3
    s_mul_i32 s36, s35, 3
    s_sub_u32 s36, s2, s36                  ; g
    s_mov_b32 s37, 0                        ; c0 base
    s_mov_b32 s38, 448                      ; c1-c0
    s_mov_b32 s39, 1.0
    s_mov_b32 s40, 1.0
    s_cmp_lt_u32 s2, 42
    s_cbranch_scc0 P_notA
    s_cmp_eq_u32 s36, 0
    s_cselect_b32 s40, {hx(f2u(28**-0.5*LOG2E))}, 1.0
    s_branch P_go
P_notA:
    s_sub_u32 s35, s2, 42
    s_mov_b32 s37, {3*448}
    s_mov_b32 s41, 0
    s_cmp_lt_u32 s2, 56
    s_cbranch_scc1 P_go
    s_sub_u32 s35, s2, 56
    s_mov_b32 s37, {2*448}
    s_mov_b32 s38, {3*448}
    s_mov_b32 s39, 0
    s_mov_b32 s41, 2
P_go:
    v_lshlrev_b32 v3, 1, v0
    buffer_load_ushort v7, v3, s[12:15], 0 offen      ; c[tid]
    s_lshl_b32 s42, s35, 5                  ; 32e
    s_add_u32 s37, s37, s42                 ; c0
    s_mul_i32 s43, s24, 56
    v_mul_u32_u24 v8, 28, v6
    v_add_u32 v8, s43, v8                   ; row0
    v_bfe_u32 v9, v1, 4, 1                  ; seg
    v_and_b32 v10, 15, v1                   ; pair
    v_mul_lo_u32 v11, v9, s38
    v_lshl_add_u32 v11, v10, 1, v11
    v_add_u32 v11, s37, v11                 ; col
    s_movk_i32 s44, 5376
    v_mul_lo_u32 v12, v8, s44
    v_lshl_add_u32 v12, v11, 1, v12         ; voff
    s_mov_b32 s45, 0
    """)
    for i in range(28):
        a(f"buffer_load_dword v{32+i}, v12, s[8:11], s45 offen")
        if i<27: a("s_add_u32 s45, s45, s44")
    a(f"""
    s_cmp_lt_u32 s2, 42
    s_cselect_b32 s46, 1, 0
    s_cmp_lt_u32 s24, 7
    s_cselect_b32 s46, s46, 0
    v_and_b32 v13, 31, v1                   ; p
    s_lshl_b32 s47, s24, 6                  ; 64j
    v_lshl_add_u32 v14, v13, 1, s47         ; n' = 64j+2p
    s_mul_i32 s48, s36, 448
    v_lshl_add_u32 v15, v6, 4, s42          ; k0 = 32e+16hf
    s_movk_i32 s49, 2688
    v_mul_lo_u32 v16, v15, s49
    v_add_u32 v17, s48, v14
    v_lshl_add_u32 v16, v17, 1, v16         ; voff2
    s_cmp_eq_u32 s46, 0
    s_cbranch_scc1 P_notask1
    s_mov_b32 s45, 0
    """)
    for i in range(16):
        a(f"buffer_load_dword v{64+i}, v16, s[16:19], s45 offen")
        if i<15: a("s_add_u32 s45, s45, s49")
    a("s_waitcnt vmcnt(44)\ns_branch P_c\nP_notask1:\ns_waitcnt vmcnt(28)\nP_c:")
    a(f"""
    v_lshlrev_b32 v7, 16, v7
    v_mul_f32 v18, {hx(f2u(-LOG2E))}, v7
    v_exp_f32 v18, v18
    v_add_f32 v18, 1.0, v18
    v_rcp_f32 v18, v18
    v_mul_f32 v7, v7, v18
    v_cvt_pk_bf16_f32 v7, v7, v7
    v_and_b32 v7, s34, v7
    v_lshlrev_b32 v3, 2, v0
    ds_write_b32 v3, v7
    v_lshlrev_b32 v18, 2, v8
    s_waitcnt lgkmcnt(0)
    s_barrier
    """)
    for i in range(7):
        a(f"ds_read_b128 v[{96+4*i}:{99+4*i}], v18 offset:{16*i}")
    a("v_mov_b32 v20, 0\nv_mov_b32 v21, 0\nv_mov_b32 v22, 0\nv_mov_b32 v23, 0")
    a("s_cmp_eq_u32 s46, 0\ns_cbranch_scc1 P_w0\ns_waitcnt vmcnt(16) lgkmcnt(0)\ns_branch P_w1\nP_w0:\ns_waitcnt vmcnt(0) lgkmcnt(0)\nP_w1:")
    for i in range(28):
        b=20+2*(i%2)
        a(f"v_dot2c_f32_bf16 v{b+1}, v{32+i}, v{96+i}")
        a(f"v_lshlrev_b32 v{32+i}, 16, v{32+i}")
        a(f"v_fmac_f32 v{b}, v{32+i}, v{96+i}")
    a(f"""
    v_add_f32 v20, v20, v22
    v_add_f32 v21, v21, v23
    s_lshl_b32 s45, s24, 9                  ; wave*2*256
    v_lshlrev_b32 v18, 8, v6                ; hf*256
    v_lshl_add_u32 v18, v13, 3, v18
    v_add_u32 v18, s45, v18
    ds_write_b64 v18, v[20:21] offset:2048
    v_lshlrev_b32 v19, 2, v1
    s_waitcnt lgkmcnt(0)
    s_barrier
    """)
    for i in range(8):
        a(f"ds_read2st64_b32 v[{32+2*i}:{33+2*i}], v19 offset0:{8+2*i} offset1:{9+2*i}")
    a("s_waitcnt lgkmcnt(0)")
    for st in (8,4,2,1):
        for i in range(st):
            a(f"v_add_f32 v{32+i}, v{32+i}, v{32+i+st}")
    a(f"""
    v_cvt_pk_bf16_f32 v32, v32, v32
    v_and_b32 v32, s34, v32
    v_add_f32 v33, s39, v32
    v_cvt_pk_bf16_f32 v33, v33, v33
    v_and_b32 v33, s34, v33                 ; bf16(one+m)
    v_cmp_gt_u32 vcc, 32, v1
    v_cndmask_b32 v32, v33, v32, vcc
    v_mul_f32 v32, s40, v32
    s_cmp_lt_u32 s2, 42
    s_cbranch_scc1 P_taskA
    s_cmp_lg_u32 s24, 0
    s_cbranch_scc1 P_end
    v_add_u32 v34, s41, v6
    v_mul_u32_u24 v34, 448, v34
    v_add_u32 v34, v34, v13
    v_add_u32 v34, s42, v34
    v_lshlrev_b32 v34, 2, v34
    v_add_u32 v34, {hx(WS_MOD)}, v34
    buffer_store_dword v32, v34, s[20:23], 0 offen
    s_endpgm
P_taskA:
    s_cmp_eq_u32 s46, 0
    s_cbranch_scc1 P_end
    s_lshl_b32 s45, s24, 8
    v_add_u32 v19, s45, v19
    ds_write_b32 v19, v32 offset:6144
    v_lshlrev_b32 v18, 6, v6
    v_add_u32 v18, s45, v18
    s_waitcnt lgkmcnt(0)
    """)
    for i in range(4):
        a(f"ds_read_b128 v[{96+4*i}:{99+4*i}], v18 offset:{6144+16*i}")
        a(f"ds_read_b128 v[{112+4*i}:{115+4*i}], v18 offset:{6144+128+16*i}")
    a(f"""
    v_mul_u32_u24 v24, 2341, v14
    v_lshrrev_b32 v24, 16, v24              ; h
    v_mul_u32_u24 v25, 28, v24
    v_sub_u32 v25, v14, v25                 ; d
    v_mul_u32_u24 v24, 3, v24
    v_add_u32 v24, s36, v24                 ; tile
    v_mul_u32_u24 v24, 29, v24              ; tile*29
    v_lshlrev_b32 v24, 10, v24
    v_lshl_add_u32 v24, v25, 4, v24
    v_add_u32 v24, {hx(WS_WQKV)}, v24
    s_lshl_b32 s45, s35, 1
    v_add_u32 v26, s45, v6                  ; step
    v_lshl_add_u32 v26, v26, 10, v24        ; dest
    s_waitcnt vmcnt(0) lgkmcnt(0)
    """)
    xpose_task(a, W=64, LO=32, F=112, S=96, OUT=48, dest=26, wsrd=20, smask=34, bias=(20,21))
    half_sum_select(a,20,21,0,0)
    a(f"""
    v_cvt_pk_bf16_f32 v20, v20, v20
    s_bfe_u32 s45, s35, 0x10002             ; hf_e
    s_lshl_b32 s45, s45, 9
    s_lshr_b32 s47, s35, 3
    s_lshl_b32 s47, s47, 3                  ; 4*(e>>3)*2
    s_and_b32 s48, s35, 3
    s_lshl_b32 s48, s48, 1
    s_add_u32 s45, s45, s47
    s_add_u32 s45, s45, s48
    s_add_u32 s45, s45, {28*1024}
    v_lshl_add_u32 v24, v6, 4, v24          ; + par*16
    buffer_store_short v20, v24, s[20:23], s45 offen
    s_cmp_lg_u32 s35, 13
    s_cbranch_scc1 P_end
    v_mov_b32 v21, 0
    s_mov_b32 s45, {28*1024+512+12}
    buffer_store_dword v21, v24, s[20:23], s45 offen
    s_endpgm
    """)
    a("P_ln:")
    srd(a,16,4,5,2048*896)
    a(f"""
    s_sub_u32 s35, s2, 70                   ; tile
    v_lshrrev_b32 v3, 4, v1
    s_lshl_b32 s36, s24, 2
    v_add_u32 v3, s36, v3
    v_and_b32 v4, 15, v1                    ; i
    s_lshl_b32 s37, s35, 5
    v_add_u32 v5, s37, v3                   ; token
    v_mul_u32_u24 v5, 896, v5
    v_lshl_add_u32 v5, v4, 6, v5
    v_cmp_gt_u32 vcc, 14, v4
    v_cndmask_b32 v5, -2.0, v5, vcc
    s_nop 0
    buffer_load_dwordx4 v[16:19], v5, s[16:19], 0 offen
    buffer_load_dwordx4 v[20:23], v5, s[16:19], 0 offen offset:16
    buffer_load_dwordx4 v[24:27], v5, s[16:19], 0 offen offset:32
    buffer_load_dwordx4 v[28:31], v5, s[16:19], 0 offen offset:48
    s_mul_i32 s38, s35, {28*1024}
    s_add_u32 s38, s38, {WS_XH}
    v_lshlrev_b32 v7, 11, v4                ; step 2i * 1024
    v_lshl_add_u32 v7, v3, 4, v7
    v_add_u32 v7, s38, v7
    v_cndmask_b32 v7, -2.0, v7, vcc
    s_waitcnt vmcnt(0)
    """)
    for q in range(16):
        a(f"v_lshlrev_b32 v{32+2*q}, 16, v{16+q}")
        a(f"v_and_b32 v{33+2*q}, s34, v{16+q}")
    a("v_add_f32 v8, v32, v33\nv_add_f32 v9, v34, v35")
    for q in range(2,16):
        a(f"v_add_f32 v{8+q%2}, v{8+q%2}, v{32+2*q}\nv_add_f32 v{8+q%2}, v{8+q%2}, v{33+2*q}")
    a("v_add_f32 v8, v8, v9")
    def rowsum(r):
        for sh in (8,4,2,1):
            a(f"v_add_f32_dpp v{r}, v{r}, v{r} row_ror:{sh} row_mask:0xf bank_mask:0xf")
    rowsum(8)
    a(f"v_mul_f32 v8, {hx(f2u(1/448))}, v8")
    for k in range(32):
        a(f"v_sub_f32 v{32+k}, v{32+k}, v8")
    a("v_mul_f32 v9, v32, v32\nv_mul_f32 v10, v33, v33")
    for k in range(2,32):
        a(f"v_fmac_f32 v{9+k%2}, v{32+k}, v{32+k}")
    a("v_add_f32 v9, v9, v10\nv_cndmask_b32 v9, 0, v9, vcc")
    rowsum(9)
    a(f"""
    v_mov_b32 v10, {hx(f2u(1e-5))}
    v_fmac_f32 v10, {hx(f2u(1/448))}, v9
    v_rsq_f32 v10, v10
    """)
    for k in range(32):
        a(f"v_mul_f32 v{32+k}, v{32+k}, v10")
    for s in range(2):
        for hfp in range(2):
            o=16+(s*2+hfp)*4
            ks=[16*s+4*hfp, 16*s+4*hfp+2, 16*s+8+4*hfp, 16*s+8+4*hfp+2]
            for q,k in enumerate(ks):
                a(f"v_cvt_pk_bf16_f32 v{o+q}, v{32+k}, v{33+k}")
            a(f"buffer_store_dwordx4 v[{o}:{o+3}], v7, s[20:23], 0 offen offset:{s*1024+hfp*512}")
    a("P_end:\ns_endpgm")
    return head("prep_kernel")+a.finish()+kd("prep_kernel",128)

def k_prep2():
    a=Asm()
    a(f"""
    s_cmp_ge_u32 s2, 161
    s_cbranch_scc1 Q_end
    s_load_dwordx2 s[4:5], s[0:1], {KA_WO}
    s_load_dwordx4 s[28:31], s[0:1], {KA_WG}
    s_load_dwordx2 s[6:7], s[0:1], {KA_WD}
    s_load_dwordx2 s[32:33], s[0:1], {KA_WS}
    v_and_b32 v1, 63, v0
    v_lshrrev_b32 v2, 6, v0
    s_mov_b32 s34, 0xffff0000
    v_readfirstlane_b32 s24, v2
    v_lshrrev_b32 v6, 5, v1                 ; hf
    v_and_b32 v13, 31, v1                   ; p
    s_lshl_b32 s25, s2, 3
    s_add_u32 s25, s25, s24
    s_mov_b32 s50, 0x3f803f80
    s_waitcnt lgkmcnt(0)
    """)
    srd(a,20,32,33,WS_SIZE)
    a(f"""
    s_cmp_ge_u32 s25, 784
    s_cbranch_scc1 Q_plain
    s_mul_i32 s35, s25, 1171
    s_lshr_b32 s35, s35, 16                 ; e = id/56
    s_mul_i32 s36, s35, 56
    s_sub_u32 s36, s25, s36                 ; cb 0..55
    s_cmp_ge_u32 s36, 28
    s_cselect_b32 s16, s30, s28
    s_cselect_b32 s17, s31, s29
    s_cselect_b32 s37, 1, 0                 ; isUp
    s_mov_b32 s18, {448*1792*2}
    s_mov_b32 s19, 0x20000
    s_mul_i32 s38, s37, 28
    s_sub_u32 s36, s36, s38
    s_lshl_b32 s42, s35, 5                  ; 32e
    v_lshl_add_u32 v15, v6, 4, s42          ; k0
    s_lshl_b32 s47, s36, 6
    v_lshl_add_u32 v14, v13, 1, s47         ; f
    s_movk_i32 s49, 3584
    v_mul_lo_u32 v16, v15, s49
    v_lshl_add_u32 v16, v14, 1, v16
    v_lshlrev_b32 v17, 2, v15
    v_add_u32 v17, {hx(WS_MOD)}, v17
    """)
    for i in range(4):
        a(f"buffer_load_dwordx4 v[{96+4*i}:{99+4*i}], v17, s[20:23], 0 offen offset:{16*i}")
        a(f"buffer_load_dwordx4 v[{112+4*i}:{115+4*i}], v17, s[20:23], 0 offen offset:{1792+16*i}")
    a("s_mov_b32 s45, 0")
    for i in range(16):
        a(f"buffer_load_dword v{64+i}, v16, s[16:19], s45 offen")
        if i<15: a("s_add_u32 s45, s45, s49")
    a(f"""
    v_lshrrev_b32 v24, 4, v14               ; t
    v_and_b32 v25, 15, v14
    s_lshl_b32 s38, s37, 4
    v_add_u32 v25, s38, v25                 ; rho
    v_mul_u32_u24 v24, 30, v24
    v_lshlrev_b32 v24, 10, v24
    v_lshl_add_u32 v24, v25, 4, v24
    v_add_u32 v24, {hx(WS_WGU)}, v24
    s_lshl_b32 s45, s35, 1
    v_add_u32 v26, s45, v6
    v_lshl_add_u32 v26, v26, 10, v24
    s_waitcnt vmcnt(0)
    """)
    xpose_task(a, W=64, LO=32, F=112, S=96, OUT=48, dest=26, wsrd=20, smask=34, bias=(20,21), cs=(22,23), ones=50)
    half_sum_select(a,20,21,0,0)
    half_sum_select(a,22,23,0,0)
    a(f"""
    v_cvt_pk_bf16_f32 v20, v20, v22
    s_bfe_u32 s45, s35, 0x10002
    s_lshl_b32 s45, s45, 9
    s_lshr_b32 s47, s35, 3
    s_lshl_b32 s47, s47, 3
    s_and_b32 s48, s35, 3
    s_lshl_b32 s48, s48, 1
    s_add_u32 s45, s45, s47
    s_add_u32 s45, s45, s48
    s_add_u32 s45, s45, {28*1024}
    v_lshl_add_u32 v24, v6, 4, v24
    buffer_store_short v20, v24, s[20:23], s45 offen
    buffer_store_short_d16_hi v20, v24, s[20:23], s45 offen offset:1024
    s_cmp_lg_u32 s35, 13
    s_cbranch_scc1 Q_end
    v_mov_b32 v21, 0
    s_mov_b32 s45, {28*1024+512+12}
    buffer_store_dword v21, v24, s[20:23], s45 offen
    buffer_store_dword v21, v24, s[20:23], s45 offen offset:1024
    s_endpgm
Q_plain:
    s_cmp_ge_u32 s25, 896
    s_cselect_b32 s16, s6, s4
    s_cselect_b32 s17, s7, s5
    s_mov_b32 s18, {448*896}
    s_cmov_b32 s18, {1792*896}
    s_mov_b32 s19, 0x20000
    s_movk_i32 s36, 784
    s_cmovk_i32 s36, 896
    s_cselect_b32 s37, 32, 28
    s_cselect_b32 s38, 112, 32
    s_mov_b32 s39, {hx(WS_WO)}
    s_cmov_b32 s39, {hx(WS_WD)}
    s_cselect_b32 s40, 1.0, 0
    s_sub_u32 s25, s25, s36
    s_mul_i32 s35, s25, 9363
    s_lshr_b32 s35, s35, 16
    s_mul_i32 s36, s35, 7
    s_sub_u32 s36, s25, s36                 ; cb
    s_mul_i32 s42, s35, s37
    v_lshl_add_u32 v15, v6, 4, s42          ; row0
    s_lshl_b32 s47, s36, 6
    v_lshl_add_u32 v14, v13, 1, s47         ; n
    v_mul_u32_u24 v16, 896, v15
    v_lshl_add_u32 v16, v14, 1, v16
    """)
    for i in range(16):
        if i<4: a(f"buffer_load_dword v{64+i}, v16, s[16:19], 0 offen offset:{896*i}")
        else:
            if i%4==0: a(f"s_movk_i32 s45, {896*i}")
            a(f"buffer_load_dword v{64+i}, v16, s[16:19], s45 offen offset:{896*(i%4)}")
    for i in range(12): a(f"v_mov_b32 v{112+i}, 1.0")
    a(f"""
    v_mov_b32 v124, s40
    v_cmp_gt_u32 vcc, 32, v1
    v_cndmask_b32 v124, v124, 1.0, vcc
    v_mov_b32 v125, v124
    v_mov_b32 v126, v124
    v_mov_b32 v127, v124
    v_lshrrev_b32 v24, 5, v14               ; ntile
    v_and_b32 v25, 31, v14
    v_mul_lo_u32 v24, v24, s38
    s_lshl_b32 s45, s35, 1
    v_add_u32 v24, s45, v24
    v_add_u32 v24, v24, v6
    v_lshlrev_b32 v24, 10, v24
    v_lshl_add_u32 v24, v25, 4, v24
    v_add_u32 v26, s39, v24
    s_waitcnt vmcnt(0)
    """)
    xpose_task(a, W=64, LO=32, F=112, S=96, OUT=48, dest=26, wsrd=20, smask=34)
    a("Q_end:\ns_endpgm")
    return head("prep2_kernel")+a.finish()+kd("prep2_kernel",128)

HEADER = open('cdna_kernels/'+NAME+'.s.ref').read().split('; Override')[0]

def build(kernels):
    s=HEADER
    for (l,g,b,lds,_) in kernels:
        s+=f"; @launch kernel={l} grid=({g},1,1) block=({b},1,1) lds={lds}\n"
    s+='.amdgcn_target "amdgcn-amd-amdhsa--gfx950"\n.text\n'
    seen=set()
    for (l,g,b,lds,t) in kernels:
        if l in seen: continue
        seen.add(l); s+=t
    return s

if __name__=="__main__":
    ks=[("prep_kernel",134,512,8192,k_prep()),
        ("prep2_kernel",161,512,0,k_prep2())]
    try:
        import gen2
        ks+=gen2.kernels()
    except ImportError:
        pass
    out=sys.argv[1] if len(sys.argv)>1 else 'cdna_kernels/'+NAME+'.s'
    open(out,'w').write(build(ks))
```

```python
import gen, gen2
from asmlib import *
ks=[("prep_kernel",134,512,8192,gen.k_prep()),("prep2_kernel",161,512,0,gen.k_prep2())]+gen2.kernels()
e=head("empty_kernel")+"  s_endpgm\n"+kd("empty_kernel",8)
for n in (8,):
    open(f'v_emptyfirst{n}.s','w').write(gen.build([("empty_kernel",256,256,0,e)]*n+ks))
```

```python
import sys, math
from asmlib import *

NAME="adaLN_cond__mha_block__glu_gated_geglu__prompt"
KA_X,KA_WQKV,KA_WO,KA_BX,KA_WG,KA_WU,KA_WD,KA_C,KA_WMOD,KA_OUT,KA_DBG,KA_WS = [8*i for i in range(12)]
KB=1024
WS_XH   = 0
WS_WQKV = WS_XH   + 64*28*KB
WS_MOD  = WS_WQKV + 48*29*KB
WS_Q    = WS_MOD  + 8*KB
WS_KV   = WS_Q    + 16*64*2*KB
WS_O    = WS_KV   + 16*64*4*KB
WS_WO   = WS_O    + 64*32*KB
WS_X1   = WS_WO   + 14*32*KB
WS_WGU  = WS_X1   + 64*28*KB
WS_HH   = WS_WGU  + 112*30*KB
WS_WD   = WS_HH   + 64*112*KB
WS_END  = WS_WD   + 14*112*KB
WS_SIZE = 268435456
LOG2E = 1.4426950408889634
import struct
def f2u(x): return struct.unpack('<I',struct.pack('<f',x))[0]
def hx(x): return hex(x & 0xffffffff)

import os
PROF=int(os.environ.get('PROF','0'))
WS_PROF=48<<20
class Prof:
    def __init__(self,a,kid,vreg): self.a=a; self.kid=kid; self.v=vreg; self.n=0
    def stamp(self):
        if not PROF: return
        if self.n==0: self.a(f"v_mov_b32 v{self.v}, 0")
        self.a(f"s_memrealtime s[90:91]\ns_memtime s[92:93]\ns_waitcnt lgkmcnt(0)\nv_writelane_b32 v{self.v}, s90, {self.n}\nv_writelane_b32 v{self.v}, s92, {self.n+32}"); self.n+=1
    def flush(self, wsrd=20, wave=24):
        if not PROF: return
        self.stamp()
        v=self.v
        self.a(f"""
        s_lshl_b32 s90, s2, 3
        s_add_u32 s90, s90, s{wave}
        s_lshl_b32 s90, s90, 8
        s_add_u32 s90, s90, {WS_PROF+self.kid*512*8*256}
        v_mbcnt_lo_u32_b32 v{v+1}, -1, 0
        v_mbcnt_hi_u32_b32 v{v+1}, -1, v{v+1}
        v_lshlrev_b32 v{v+1}, 2, v{v+1}
        buffer_store_dword v{v}, v{v+1}, s[{wsrd}:{wsrd+3}], s90 offen
        """)

def srd(a, d, lo, hi, size):
    a(f"s_mov_b32 s{d}, s{lo}\ns_mov_b32 s{d+1}, s{hi}\ns_mov_b32 s{d+2}, {hx(size)}\ns_mov_b32 s{d+3}, 0x20000")

def xpose_task(a, W, LO, F, S, OUT, dest, wsrd, smask, bias=None, cs=None, ones=None):
    if bias: a(f"v_mov_b32 v{bias[0]}, 0\nv_mov_b32 v{bias[1]}, 0")
    for i in range(16):
        a(f"v_lshlrev_b32 v{LO+i}, 16, v{W+i}")
        a(f"v_and_b32 v{W+i}, s{smask}, v{W+i}")
        if bias:
            a(f"v_fmac_f32 v{bias[0]}, v{LO+i}, v{S+i}")
            a(f"v_fmac_f32 v{bias[1]}, v{W+i}, v{S+i}")
        a(f"v_mul_f32 v{LO+i}, v{LO+i}, v{F+i}")
        a(f"v_mul_f32 v{W+i}, v{W+i}, v{F+i}")
    rows=[[0,2,8,10],[4,6,12,14]]
    for hfp in range(2):
        for col,src in enumerate((LO,W)):
            o=OUT+(hfp*2+col)*4
            for q,r in enumerate(rows[hfp]):
                a(f"v_cvt_pk_bf16_f32 v{o+q}, v{src+r}, v{src+r+1}")
            a(f"buffer_store_dwordx4 v[{o}:{o+3}], v{dest}, s[{wsrd}:{wsrd+3}], 0 offen offset:{hfp*512+col*16}")
    if cs:
        a(f"v_mov_b32 v{cs[0]}, 0\nv_mov_b32 v{cs[1]}, 0")
        for hfp in range(2):
            for q in range(4):
                for col in range(2):
                    o=OUT+(hfp*2+col)*4
                    a(f"v_dot2c_f32_bf16 v{cs[col]}, s{ones}, v{o+q}")

def half_sum_select(a, x0, x1, t0, t1):
    a(f"v_permlane32_swap_b32 v{x0}, v{x1}")
    a(f"v_add_f32 v{x0}, v{x0}, v{x1}")

def k_prep():
    a=Asm()
    a("""
    s_cmp_ge_u32 s2, 134
    s_cbranch_scc1 P_exit
    s_load_dwordx4 s[4:7], s[0:1], 0        ; x, wqkv
    s_load_dwordx4 s[28:31], s[0:1], 56     ; c, w_mod
    s_load_dwordx2 s[32:33], s[0:1], 88     ; ws
    v_and_b32 v1, 63, v0
    v_lshrrev_b32 v2, 6, v0
    s_mov_b32 s34, 0xffff0000
    v_readfirstlane_b32 s24, v2             ; wave
    v_lshrrev_b32 v6, 5, v1                 ; hf
    s_waitcnt lgkmcnt(0)
    """)
    pf=Prof(a,0,244); pf.stamp()
    srd(a,20,32,33,WS_SIZE)
    a("s_cmp_ge_u32 s2, 70\ns_cbranch_scc1 P_ln")
    srd(a,8,30,31,448*2688*2)
    srd(a,12,28,29,896)
    srd(a,16,6,7,448*1344*2)
    a(f"""
    s_mul_i32 s35, s2, 43691
    s_lshr_b32 s35, s35, 17                 ; s35 = id/3
    s_mul_i32 s36, s35, 3
    s_sub_u32 s36, s2, s36                  ; g
    s_mov_b32 s37, 0                        ; c0 base
    s_mov_b32 s38, 448                      ; c1-c0
    s_mov_b32 s39, 1.0
    s_mov_b32 s40, 1.0
    s_cmp_lt_u32 s2, 42
    s_cbranch_scc0 P_notA
    s_cmp_eq_u32 s36, 0
    s_cselect_b32 s40, {hx(f2u(28**-0.5*LOG2E))}, 1.0
    s_branch P_go
P_notA:
    s_sub_u32 s35, s2, 42
    s_mov_b32 s37, {3*448}
    s_mov_b32 s41, 0
    s_cmp_lt_u32 s2, 56
    s_cbranch_scc1 P_go
    s_sub_u32 s35, s2, 56
    s_mov_b32 s37, {2*448}
    s_mov_b32 s38, {3*448}
    s_mov_b32 s39, 0
    s_mov_b32 s41, 2
P_go:
    v_lshlrev_b32 v3, 1, v0
    buffer_load_ushort v7, v3, s[12:15], 0 offen      ; c[tid]
    s_lshl_b32 s42, s35, 5                  ; 32e
    s_add_u32 s37, s37, s42                 ; c0
    s_mul_i32 s43, s24, 56
    v_mul_u32_u24 v8, 28, v6
    v_add_u32 v8, s43, v8                   ; row0
    v_bfe_u32 v9, v1, 4, 1                  ; seg
    v_and_b32 v10, 15, v1                   ; pair
    v_mul_lo_u32 v11, v9, s38
    v_lshl_add_u32 v11, v10, 1, v11
    v_add_u32 v11, s37, v11                 ; col
    s_movk_i32 s44, 5376
    v_mul_lo_u32 v12, v8, s44
    v_lshl_add_u32 v12, v11, 1, v12         ; voff
    s_mov_b32 s45, 0
    """)
    for i in range(28):
        a(f"buffer_load_dword v{32+i}, v12, s[8:11], s45 offen")
        if i<27: a("s_add_u32 s45, s45, s44")
    a(f"""
    s_cmp_lt_u32 s2, 42
    s_cselect_b32 s46, 1, 0
    s_cmp_lt_u32 s24, 7
    s_cselect_b32 s46, s46, 0
    v_and_b32 v13, 31, v1                   ; p
    s_lshl_b32 s47, s24, 6                  ; 64j
    v_lshl_add_u32 v14, v13, 1, s47         ; n' = 64j+2p
    s_mul_i32 s48, s36, 448
    v_lshl_add_u32 v15, v6, 4, s42          ; k0 = 32e+16hf
    s_movk_i32 s49, 2688
    v_mul_lo_u32 v16, v15, s49
    v_add_u32 v17, s48, v14
    v_lshl_add_u32 v16, v17, 1, v16         ; voff2
    s_cmp_eq_u32 s46, 0
    s_cbranch_scc1 P_notask1
    s_mov_b32 s45, 0
    """)
    for i in range(16):
        a(f"buffer_load_dword v{64+i}, v16, s[16:19], s45 offen")
        if i<15: a("s_add_u32 s45, s45, s49")
    a("s_waitcnt vmcnt(44)\ns_branch P_c\nP_notask1:\ns_waitcnt vmcnt(28)\nP_c:")
    a(f"""
    v_lshlrev_b32 v7, 16, v7
    v_mul_f32 v18, {hx(f2u(-LOG2E))}, v7
    v_exp_f32 v18, v18
    v_add_f32 v18, 1.0, v18
    v_rcp_f32 v18, v18
    v_mul_f32 v7, v7, v18
    v_cvt_pk_bf16_f32 v7, v7, v7
    v_and_b32 v7, s34, v7
    v_lshlrev_b32 v3, 2, v0
    ds_write_b32 v3, v7
    v_lshlrev_b32 v18, 2, v8
    s_waitcnt lgkmcnt(0)
    s_barrier
    """)
    for i in range(7):
        a(f"ds_read_b128 v[{96+4*i}:{99+4*i}], v18 offset:{16*i}")
    a("v_mov_b32 v20, 0\nv_mov_b32 v21, 0\nv_mov_b32 v22, 0\nv_mov_b32 v23, 0")
    a("s_cmp_eq_u32 s46, 0\ns_cbranch_scc1 P_w0\ns_waitcnt vmcnt(16) lgkmcnt(0)\ns_branch P_w1\nP_w0:\ns_waitcnt vmcnt(0) lgkmcnt(0)\nP_w1:")
    for i in range(28):
        b=20+2*(i%2)
        a(f"v_dot2c_f32_bf16 v{b+1}, v{32+i}, v{96+i}")
        a(f"v_lshlrev_b32 v{32+i}, 16, v{32+i}")
        a(f"v_fmac_f32 v{b}, v{32+i}, v{96+i}")
    a(f"""
    v_add_f32 v20, v20, v22
    v_add_f32 v21, v21, v23
    s_lshl_b32 s45, s24, 9                  ; wave*2*256
    v_lshlrev_b32 v18, 8, v6                ; hf*256
    v_lshl_add_u32 v18, v13, 3, v18
    v_add_u32 v18, s45, v18
    ds_write_b64 v18, v[20:21] offset:2048
    v_lshlrev_b32 v19, 2, v1
    s_waitcnt lgkmcnt(0)
    s_barrier
    """)
    for i in range(8):
        a(f"ds_read2st64_b32 v[{32+2*i}:{33+2*i}], v19 offset0:{8+2*i} offset1:{9+2*i}")
    a("s_waitcnt lgkmcnt(0)")
    for st in (8,4,2,1):
        for i in range(st):
            a(f"v_add_f32 v{32+i}, v{32+i}, v{32+i+st}")
    a(f"""
    v_cvt_pk_bf16_f32 v32, v32, v32
    v_and_b32 v32, s34, v32
    v_add_f32 v33, s39, v32
    v_cvt_pk_bf16_f32 v33, v33, v33
    v_and_b32 v33, s34, v33                 ; bf16(one+m)
    v_cmp_gt_u32 vcc, 32, v1
    v_cndmask_b32 v32, v33, v32, vcc
    v_mul_f32 v32, s40, v32
    s_cmp_lt_u32 s2, 42
    s_cbranch_scc1 P_taskA
    s_cmp_lg_u32 s24, 0
    s_cbranch_scc1 P_end
    v_add_u32 v34, s41, v6
    v_mul_u32_u24 v34, 448, v34
    v_add_u32 v34, v34, v13
    v_add_u32 v34, s42, v34
    v_lshlrev_b32 v34, 2, v34
    v_add_u32 v34, {hx(WS_MOD)}, v34
    buffer_store_dword v32, v34, s[20:23], 0 offen
    s_branch P_end
P_taskA:
    s_cmp_eq_u32 s46, 0
    s_cbranch_scc1 P_end
    s_lshl_b32 s45, s24, 8
    v_add_u32 v19, s45, v19
    ds_write_b32 v19, v32 offset:6144
    v_lshlrev_b32 v18, 6, v6
    v_add_u32 v18, s45, v18
    s_waitcnt lgkmcnt(0)
    """)
    for i in range(4):
        a(f"ds_read_b128 v[{96+4*i}:{99+4*i}], v18 offset:{6144+16*i}")
        a(f"ds_read_b128 v[{112+4*i}:{115+4*i}], v18 offset:{6144+128+16*i}")
    a(f"""
    v_mul_u32_u24 v24, 2341, v14
    v_lshrrev_b32 v24, 16, v24              ; h
    v_mul_u32_u24 v25, 28, v24
    v_sub_u32 v25, v14, v25                 ; d
    v_mul_u32_u24 v24, 3, v24
    v_add_u32 v24, s36, v24                 ; tile
    v_mul_u32_u24 v24, 29, v24              ; tile*29
    v_lshlrev_b32 v24, 10, v24
    v_lshl_add_u32 v24, v25, 4, v24
    v_add_u32 v24, {hx(WS_WQKV)}, v24
    s_lshl_b32 s45, s35, 1
    v_add_u32 v26, s45, v6                  ; step
    v_lshl_add_u32 v26, v26, 10, v24        ; dest
    s_waitcnt vmcnt(0) lgkmcnt(0)
    """)
    xpose_task(a, W=64, LO=32, F=112, S=96, OUT=48, dest=26, wsrd=20, smask=34, bias=(20,21))
    half_sum_select(a,20,21,0,0)
    a(f"""
    v_cvt_pk_bf16_f32 v20, v20, v20
    s_bfe_u32 s45, s35, 0x10002             ; hf_e
    s_lshl_b32 s45, s45, 9
    s_lshr_b32 s47, s35, 3
    s_lshl_b32 s47, s47, 3                  ; 4*(e>>3)*2
    s_and_b32 s48, s35, 3
    s_lshl_b32 s48, s48, 1
    s_add_u32 s45, s45, s47
    s_add_u32 s45, s45, s48
    s_add_u32 s45, s45, {28*1024}
    v_lshl_add_u32 v24, v6, 4, v24          ; + par*16
    buffer_store_short v20, v24, s[20:23], s45 offen
    s_cmp_lg_u32 s35, 13
    s_cbranch_scc1 P_end
    v_mov_b32 v21, 0
    s_mov_b32 s45, {28*1024+512+12}
    buffer_store_dword v21, v24, s[20:23], s45 offen
    s_branch P_end
    """)
    a("P_ln:")
    srd(a,16,4,5,2048*896)
    a(f"""
    s_sub_u32 s35, s2, 70                   ; tile
    v_lshrrev_b32 v3, 4, v1
    s_lshl_b32 s36, s24, 2
    v_add_u32 v3, s36, v3
    v_and_b32 v4, 15, v1                    ; i
    s_lshl_b32 s37, s35, 5
    v_add_u32 v5, s37, v3                   ; token
    v_mul_u32_u24 v5, 896, v5
    v_lshl_add_u32 v5, v4, 6, v5
    v_cmp_gt_u32 vcc, 14, v4
    v_cndmask_b32 v5, -2.0, v5, vcc
    s_nop 0
    buffer_load_dwordx4 v[16:19], v5, s[16:19], 0 offen
    buffer_load_dwordx4 v[20:23], v5, s[16:19], 0 offen offset:16
    buffer_load_dwordx4 v[24:27], v5, s[16:19], 0 offen offset:32
    buffer_load_dwordx4 v[28:31], v5, s[16:19], 0 offen offset:48
    s_mul_i32 s38, s35, {28*1024}
    s_add_u32 s38, s38, {WS_XH}
    v_lshlrev_b32 v7, 11, v4                ; step 2i * 1024
    v_lshl_add_u32 v7, v3, 4, v7
    v_add_u32 v7, s38, v7
    v_cndmask_b32 v7, -2.0, v7, vcc
    s_waitcnt vmcnt(0)
    """)
    for q in range(16):
        a(f"v_lshlrev_b32 v{32+2*q}, 16, v{16+q}")
        a(f"v_and_b32 v{33+2*q}, s34, v{16+q}")
    a("v_add_f32 v8, v32, v33\nv_add_f32 v9, v34, v35")
    for q in range(2,16):
        a(f"v_add_f32 v{8+q%2}, v{8+q%2}, v{32+2*q}\nv_add_f32 v{8+q%2}, v{8+q%2}, v{33+2*q}")
    a("v_add_f32 v8, v8, v9")
    def rowsum(r):
        for sh in (8,4,2,1):
            a(f"v_add_f32_dpp v{r}, v{r}, v{r} row_ror:{sh} row_mask:0xf bank_mask:0xf")
    rowsum(8)
    a(f"v_mul_f32 v8, {hx(f2u(1/448))}, v8")
    for k in range(32):
        a(f"v_sub_f32 v{32+k}, v{32+k}, v8")
    a("v_mul_f32 v9, v32, v32\nv_mul_f32 v10, v33, v33")
    for k in range(2,32):
        a(f"v_fmac_f32 v{9+k%2}, v{32+k}, v{32+k}")
    a("v_add_f32 v9, v9, v10\nv_cndmask_b32 v9, 0, v9, vcc")
    rowsum(9)
    a(f"""
    v_mov_b32 v10, {hx(f2u(1e-5))}
    v_fmac_f32 v10, {hx(f2u(1/448))}, v9
    v_rsq_f32 v10, v10
    """)
    for k in range(32):
        a(f"v_mul_f32 v{32+k}, v{32+k}, v10")
    for s in range(2):
        for hfp in range(2):
            o=16+(s*2+hfp)*4
            ks=[16*s+4*hfp, 16*s+4*hfp+2, 16*s+8+4*hfp, 16*s+8+4*hfp+2]
            for q,k in enumerate(ks):
                a(f"v_cvt_pk_bf16_f32 v{o+q}, v{32+k}, v{33+k}")
            a(f"buffer_store_dwordx4 v[{o}:{o+3}], v7, s[20:23], 0 offen offset:{s*1024+hfp*512}")
    a("P_end:")
    pf.stamp()
    if PROF: a("s_waitcnt vmcnt(0)")
    pf.flush()
    a("P_exit:\ns_endpgm")
    return head("prep_kernel")+a.finish()+kd("prep_kernel",128)

def k_prep2():
    a=Asm()
    a(f"""
    s_cmp_ge_u32 s2, 161
    s_cbranch_scc1 Q_exit
    s_load_dwordx2 s[4:5], s[0:1], {KA_WO}
    s_load_dwordx4 s[28:31], s[0:1], {KA_WG}
    s_load_dwordx2 s[6:7], s[0:1], {KA_WD}
    s_load_dwordx2 s[32:33], s[0:1], {KA_WS}
    v_and_b32 v1, 63, v0
    v_lshrrev_b32 v2, 6, v0
    s_mov_b32 s34, 0xffff0000
    v_readfirstlane_b32 s24, v2
    v_lshrrev_b32 v6, 5, v1                 ; hf
    v_and_b32 v13, 31, v1                   ; p
    s_lshl_b32 s25, s2, 3
    s_add_u32 s25, s25, s24
    s_mov_b32 s50, 0x3f803f80
    s_waitcnt lgkmcnt(0)
    """)
    pf=Prof(a,1,244); pf.stamp()
    srd(a,20,32,33,WS_SIZE)
    a(f"""
    s_cmp_ge_u32 s25, 784
    s_cbranch_scc1 Q_plain
    s_mul_i32 s35, s25, 1171
    s_lshr_b32 s35, s35, 16                 ; e = id/56
    s_mul_i32 s36, s35, 56
    s_sub_u32 s36, s25, s36                 ; cb 0..55
    s_cmp_ge_u32 s36, 28
    s_cselect_b32 s16, s30, s28
    s_cselect_b32 s17, s31, s29
    s_cselect_b32 s37, 1, 0                 ; isUp
    s_mov_b32 s18, {448*1792*2}
    s_mov_b32 s19, 0x20000
    s_mul_i32 s38, s37, 28
    s_sub_u32 s36, s36, s38
    s_lshl_b32 s42, s35, 5                  ; 32e
    v_lshl_add_u32 v15, v6, 4, s42          ; k0
    s_lshl_b32 s47, s36, 6
    v_lshl_add_u32 v14, v13, 1, s47         ; f
    s_movk_i32 s49, 3584
    v_mul_lo_u32 v16, v15, s49
    v_lshl_add_u32 v16, v14, 1, v16
    v_lshlrev_b32 v17, 2, v15
    v_add_u32 v17, {hx(WS_MOD)}, v17
    """)
    for i in range(4):
        a(f"buffer_load_dwordx4 v[{96+4*i}:{99+4*i}], v17, s[20:23], 0 offen offset:{16*i}")
        a(f"buffer_load_dwordx4 v[{112+4*i}:{115+4*i}], v17, s[20:23], 0 offen offset:{1792+16*i}")
    a("s_mov_b32 s45, 0")
    for i in range(16):
        a(f"buffer_load_dword v{64+i}, v16, s[16:19], s45 offen")
        if i<15: a("s_add_u32 s45, s45, s49")
    a(f"""
    v_lshrrev_b32 v24, 4, v14               ; t
    v_and_b32 v25, 15, v14
    s_lshl_b32 s38, s37, 4
    v_add_u32 v25, s38, v25                 ; rho
    v_mul_u32_u24 v24, 30, v24
    v_lshlrev_b32 v24, 10, v24
    v_lshl_add_u32 v24, v25, 4, v24
    v_add_u32 v24, {hx(WS_WGU)}, v24
    s_lshl_b32 s45, s35, 1
    v_add_u32 v26, s45, v6
    v_lshl_add_u32 v26, v26, 10, v24
    s_waitcnt vmcnt(0)
    """)
    xpose_task(a, W=64, LO=32, F=112, S=96, OUT=48, dest=26, wsrd=20, smask=34, bias=(20,21), cs=(22,23), ones=50)
    half_sum_select(a,20,21,0,0)
    half_sum_select(a,22,23,0,0)
    a(f"""
    v_cvt_pk_bf16_f32 v20, v20, v22
    s_bfe_u32 s45, s35, 0x10002
    s_lshl_b32 s45, s45, 9
    s_lshr_b32 s47, s35, 3
    s_lshl_b32 s47, s47, 3
    s_and_b32 s48, s35, 3
    s_lshl_b32 s48, s48, 1
    s_add_u32 s45, s45, s47
    s_add_u32 s45, s45, s48
    s_add_u32 s45, s45, {28*1024}
    v_lshl_add_u32 v24, v6, 4, v24
    buffer_store_short v20, v24, s[20:23], s45 offen
    buffer_store_short_d16_hi v20, v24, s[20:23], s45 offen offset:1024
    s_cmp_lg_u32 s35, 13
    s_cbranch_scc1 Q_end
    v_mov_b32 v21, 0
    s_mov_b32 s45, {28*1024+512+12}
    buffer_store_dword v21, v24, s[20:23], s45 offen
    buffer_store_dword v21, v24, s[20:23], s45 offen offset:1024
    s_branch Q_end
Q_plain:
    s_cmp_ge_u32 s25, 896
    s_cselect_b32 s16, s6, s4
    s_cselect_b32 s17, s7, s5
    s_mov_b32 s18, {448*896}
    s_cmov_b32 s18, {1792*896}
    s_mov_b32 s19, 0x20000
    s_movk_i32 s36, 784
    s_cmovk_i32 s36, 896
    s_cselect_b32 s37, 32, 28
    s_cselect_b32 s38, 112, 32
    s_mov_b32 s39, {hx(WS_WO)}
    s_cmov_b32 s39, {hx(WS_WD)}
    s_cselect_b32 s40, 1.0, 0
    s_sub_u32 s25, s25, s36
    s_mul_i32 s35, s25, 9363
    s_lshr_b32 s35, s35, 16
    s_mul_i32 s36, s35, 7
    s_sub_u32 s36, s25, s36                 ; cb
    s_mul_i32 s42, s35, s37
    v_lshl_add_u32 v15, v6, 4, s42          ; row0
    s_lshl_b32 s47, s36, 6
    v_lshl_add_u32 v14, v13, 1, s47         ; n
    v_mul_u32_u24 v16, 896, v15
    v_lshl_add_u32 v16, v14, 1, v16
    """)
    for i in range(16):
        if i<4: a(f"buffer_load_dword v{64+i}, v16, s[16:19], 0 offen offset:{896*i}")
        else:
            if i%4==0: a(f"s_movk_i32 s45, {896*i}")
            a(f"buffer_load_dword v{64+i}, v16, s[16:19], s45 offen offset:{896*(i%4)}")
    for i in range(12): a(f"v_mov_b32 v{112+i}, 1.0")
    a(f"""
    v_mov_b32 v124, s40
    v_cmp_gt_u32 vcc, 32, v1
    v_cndmask_b32 v124, v124, 1.0, vcc
    v_mov_b32 v125, v124
    v_mov_b32 v126, v124
    v_mov_b32 v127, v124
    v_lshrrev_b32 v24, 5, v14               ; ntile
    v_and_b32 v25, 31, v14
    v_mul_lo_u32 v24, v24, s38
    s_lshl_b32 s45, s35, 1
    v_add_u32 v24, s45, v24
    v_add_u32 v24, v24, v6
    v_lshlrev_b32 v24, 10, v24
    v_lshl_add_u32 v24, v25, 4, v24
    v_add_u32 v26, s39, v24
    s_waitcnt vmcnt(0)
    """)
    xpose_task(a, W=64, LO=32, F=112, S=96, OUT=48, dest=26, wsrd=20, smask=34)
    a("Q_end:")
    pf.stamp()
    if PROF: a("s_waitcnt vmcnt(0)")
    pf.flush()
    a("Q_exit:\ns_endpgm")
    return head("prep2_kernel")+a.finish()+kd("prep2_kernel",128)

HEADER = open('cdna_kernels/'+NAME+'.s.ref').read().split('; Override')[0]

def build(kernels):
    s=HEADER
    for (l,g,b,lds,_) in kernels:
        s+=f"; @launch kernel={l} grid=({g},1,1) block=({b},1,1) lds={lds}\n"
    s+='.amdgcn_target "amdgcn-amd-amdhsa--gfx950"\n.text\n'
    seen=set()
    for (l,g,b,lds,t) in kernels:
        if l in seen: continue
        seen.add(l); s+=t
    return s

if __name__=="__main__":
    ks=[("prep_kernel",134,512,8192,k_prep()),
        ("prep2_kernel",161,512,0,k_prep2())]
    try:
        import gen2
        ks+=gen2.kernels()
    except ImportError:
        pass
    out=sys.argv[1] if len(sys.argv)>1 else 'cdna_kernels/'+NAME+'.s'
    open(out,'w').write(build(ks))
```

```python
from asmlib import *
from gen import *

MF="v_mfma_f32_32x32x16_bf16"
def R(b,n=4,c='v'): return f"{c}[{b}:{b+n-1}]"

def common(a, ngrid, end, kid):
    a(f"""
    s_cmp_ge_u32 s2, {ngrid}
    s_cbranch_scc1 {end}
    s_load_dwordx2 s[32:33], s[0:1], {KA_WS}
    v_and_b32 v1, 63, v0
    v_lshrrev_b32 v2, 6, v0
    v_lshlrev_b32 v3, 4, v1                 ; lane*16
    v_readfirstlane_b32 s24, v2             ; wave
    """)
    p=Prof(a,kid,244); p.stamp(); return p

def k_qkv():
    a=Asm()
    pf=common(a,256,"A_end",2)
    ACC=16; T=64; WB=176
    a(f"""
    s_and_b32 s25, s2, 7
    s_lshl_b32 s25, s25, 1
    s_bfe_u32 s26, s2, 0x10003
    s_add_u32 s25, s25, s26                 ; h
    s_lshr_b32 s26, s2, 4                   ; rb
    s_lshl_b32 s26, s26, 2
    s_add_u32 s26, s26, s24                 ; tt
    s_mul_i32 s27, s26, {28*KB}
    s_add_u32 s27, s27, {WS_XH}             ; T base
    s_mul_i32 s28, s25, {87*KB}
    s_add_u32 s28, s28, {WS_WQKV}           ; W base
    s_lshl_b32 s29, s24, 11                 ; 2w KB
    s_waitcnt lgkmcnt(0)
    """)
    srd(a,20,32,33,WS_SIZE)
    def dma(ldsoff_expr_sreg, offs):
        a("s_mov_b32 m0, s30\ns_add_u32 s31, s28, s30")
        for o in offs:
            a(f"buffer_load_dwordx4 v3, s[20:23], s31 offen offset:{o} lds")
    for c in range(3):
        for p in range(3):
            a(f"s_add_u32 s30, s29, {(p*29+8*c)*KB}")
            dma(None,(0,1024))
        for g in range(2):
            a(f"s_add_u32 s31, s27, {(8*c+4*g)*KB}")
            for i in range(4):
                s=8*c+4*g+i
                a(f"buffer_load_dwordx4 {R(T+4*s)}, v3, s[20:23], s31 offen offset:{i*1024}")
    a("s_lshl_b32 s29, s24, 10")
    for p in range(3):
        a(f"s_add_u32 s30, s29, {(p*29+24)*KB}")
        dma(None,(0,))
    a(f"s_min_u32 s30, s24, 2\ns_mul_i32 s30, s30, {29*KB}\ns_add_u32 s30, s30, {28*KB}")
    dma(None,(0,))
    a(f"s_add_u32 s31, s27, {24*KB}")
    for i in range(4):
        a(f"buffer_load_dwordx4 {R(T+4*(24+i))}, v3, s[20:23], s31 offen offset:{i*1024}")
    ONES=200
    for i in range(4): a(f"v_mov_b32 v{ONES+i}, 0x3f803f80")
    a(f"v_add_u32 v4, {58*KB}, v3")
    def rd(s,buf):
        for p in range(3):
            if p<2: a(f"ds_read_b128 {R(WB+12*buf+4*p)}, v3 offset:{(p*29+s)*KB}")
            else:   a(f"ds_read_b128 {R(WB+12*buf+4*p)}, v4 offset:{s*KB}")
    chunks=[(range(0,8),36),(range(8,16),22),(range(16,24),8),(range(24,29),0)]
    for steps,vm in chunks:
        pf.stamp()
        a(f"s_waitcnt vmcnt({vm})\ns_barrier")
        pf.stamp()
        steps=list(steps)
        rd(steps[0],steps[0]%2)
        for s in steps:
            last = (s==steps[-1])
            if not last: rd(s+1,(s+1)%2)
            a(f"s_waitcnt lgkmcnt({0 if last else 3})")
            t = R(T+4*s) if s<28 else R(ONES)
            for p in range(3):
                w=R(WB+12*(s%2)+4*p); d=R(ACC+16*p,16); c = "0" if s==0 else d
                if p<2: a(f"{MF} {d}, {w}, {t}, {c}")
                else:   a(f"{MF} {d}, {t}, {w}, {c}")
    pf.stamp()
    O=64
    a(f"""
    s_lshl_b32 s27, s25, 6
    s_add_u32 s27, s27, s26                 ; h*64+tt
    s_lshl_b32 s28, s27, 11
    s_add_u32 s28, s28, {WS_Q}
    s_lshl_b32 s29, s27, 12
    s_add_u32 s29, s29, {WS_KV}
    v_and_b32 v5, 31, v1
    v_cmp_eq_u32 vcc, 28, v5
    v_mov_b32 v6, 0x3f803f80
    v_cndmask_b32 v6, 0, v6, vcc
    """)
    for p in range(3):
        for q in range(8):
            a(f"v_cvt_pk_bf16_f32 v{O+8*p+q}, v{ACC+16*p+2*q}, v{ACC+16*p+2*q+1}")
    a(f"""
    s_mov_b32 exec_lo, 0
    v_mov_b32 v{O+6}, 0
    v_mov_b32 v{O+7}, 0
    v_mov_b32 v{O+8+6}, 0x3f803f80
    v_mov_b32 v{O+8+7}, 0x3f80
    s_mov_b32 exec_lo, 0xf0000000
    s_mov_b32 exec_hi, 0xf0000000
    """)
    for q in range(8): a(f"v_mov_b32 v{O+16+q}, v6")
    a("s_mov_b64 exec, -1")
    a(f"""
    buffer_store_dwordx4 {R(O)}, v3, s[20:23], s28 offen
    buffer_store_dwordx4 {R(O+4)}, v3, s[20:23], s28 offen offset:1024
    buffer_store_dwordx4 {R(O+8)}, v3, s[20:23], s29 offen
    buffer_store_dwordx4 {R(O+12)}, v3, s[20:23], s29 offen offset:1024
    buffer_store_dwordx4 {R(O+16)}, v3, s[20:23], s29 offen offset:2048
    buffer_store_dwordx4 {R(O+20)}, v3, s[20:23], s29 offen offset:3072
    """)
    pf.stamp()
    if PROF: a("s_waitcnt vmcnt(0)")
    pf.flush()
    a("A_end:\ns_endpgm")
    return head("qkv_kernel")+a.finish()+kd("qkv_kernel",204)


def reduce4(a, pf, acc_cls, ACC, RD, vlane16=3, t=4):
    for i in range(1,4):
        a(f"v_add_u32 v{t}, s{39+i}, v{vlane16}")
        for q in range(4):
            a(f"ds_write_b128 v{t}, {R(ACC+16*i+4*q,4,acc_cls)} offset:{q*1024}")
    a(f"v_add_u32 v{t}, s43, v{vlane16}")
    if acc_cls=='a':
        for r in range(16): a(f"v_accvgpr_read_b32 v{RD+48+r}, a{ACC+r}")
    a("s_waitcnt lgkmcnt(0)")
    pf.stamp()
    a("s_barrier")
    pf.stamp()
    for i in range(3):
        for q in range(4):
            a(f"ds_read_b128 {R(RD+16*i+4*q)}, v{t} offset:{i*4096+q*1024}")
    for i in range(3):
        for q in range(4):
            a(f"s_waitcnt lgkmcnt({11-4*i-q})")
            for e in range(4):
                r=4*q+e
                src = f"v{ACC+r}" if (acc_cls=='v' and i==0) else f"v{RD+48+r}"
                a(f"v_add_f32 v{RD+48+r}, {src}, v{RD+16*i+r}")

def k_attn():
    a=Asm()
    pf=common(a,256,"B_end",3)
    Q=16; S=48; P=80; KV=96; TMP=160
    a(f"""
    s_and_b32 s25, s2, 7
    s_lshl_b32 s25, s25, 1
    s_bfe_u32 s26, s2, 0x10003
    s_add_u32 s25, s25, s26                 ; h
    s_lshr_b32 s26, s2, 4                   ; qb
    s_lshl_b32 s27, s25, 6                  ; h*64
    s_lshl_b32 s28, s26, 2
    s_add_u32 s28, s28, s27                 ; h*64+qb*4
    s_lshl_b32 s28, s28, 11
    s_add_u32 s28, s28, {WS_Q}              ; Q base
    s_lshl_b32 s29, s27, 12
    s_add_u32 s29, s29, {WS_KV}
    s_lshl_b32 s30, s24, 16
    s_add_u32 s30, s30, s29
    s_add_u32 s38, s30, 65536               ; limit
    s_mov_b32 s34, 0xffff0000
    s_waitcnt lgkmcnt(0)
    """)
    srd(a,20,32,33,WS_SIZE)
    for i in range(4):
        a(f"s_add_u32 s31, s24, {i}\ns_and_b32 s31, s31, 3")
        if i>0: a(f"s_mul_i32 s{39+i}, s31, 3\ns_add_u32 s{39+i}, s{39+i}, {i-1}\ns_lshl_b32 s{39+i}, s{39+i}, 12")
        a(f"s_lshl_b32 s31, s31, 11\ns_add_u32 s31, s31, s28")
        a(f"buffer_load_dwordx4 {R(Q+8*i)}, v3, s[20:23], s31 offen")
        a(f"buffer_load_dwordx4 {R(Q+8*i+4)}, v3, s[20:23], s31 offen offset:1024")
    a("s_mul_i32 s43, s24, 12288")
    a(f"buffer_load_dwordx4 {R(TMP)}, v3, s[20:23], s29 offen")
    a(f"buffer_load_dwordx4 {R(TMP+4)}, v3, s[20:23], s29 offen offset:1024")
    def ldK(buf,sreg):
        a(f"buffer_load_dwordx4 {R(KV+16*buf)}, v3, s[20:23], s{sreg} offen")
        a(f"buffer_load_dwordx4 {R(KV+16*buf+4)}, v3, s[20:23], s{sreg} offen offset:1024")
    def ldV(buf,sreg):
        a(f"buffer_load_dwordx4 {R(KV+16*buf+8)}, v3, s[20:23], s{sreg} offen offset:2048")
        a(f"buffer_load_dwordx4 {R(KV+16*buf+12)}, v3, s[20:23], s{sreg} offen offset:3072")
    a("s_mov_b32 s31, s30")
    for b in range(4):
        ldK(b,31)
        if b<3:
            ldV(b,31); a("s_add_u32 s31, s31, 4096")
    a("s_mov_b32 s36, s31")
    for i in range(64): a(f"v_accvgpr_write_b32 a{i}, 0")
    for i in range(8): a(f"v_mov_b32 v{P+8+i}, 0\nv_mov_b32 v{KV+48+8+i}, 0")
    pf.stamp()
    a("s_waitcnt vmcnt(14)")
    pf.stamp()
    SM=[S,S+16,TMP+16,TMP+32]
    for i in range(4):
        a(f"{MF} {R(SM[i],16)}, {R(TMP)}, {R(Q+8*i)}, 0")
        a(f"{MF} {R(SM[i],16)}, {R(TMP+4)}, {R(Q+8*i+4)}, {R(SM[i],16)}")
    for i in range(4):
        s=SM[i]; m=TMP+8+i
        a(f"v_max3_f32 v{m}, v{s}, v{s+1}, v{s+2}")
        for k in range(3,15,2): a(f"v_max3_f32 v{m}, v{m}, v{s+k}, v{s+k+1}")
        a(f"v_max_f32 v{m}, v{m}, v{s+15}")
        a(f"v_mov_b32 v{TMP+12}, v{m}")
        a(f"v_permlane32_swap_b32 v{m}, v{TMP+12}")
        a(f"v_max_f32 v{m}, v{m}, v{TMP+12}")
    def set_m(i,m,t):
        a(f"""
        v_cvt_pk_bf16_f32 v{t}, -v{m}, -v{m}
        v_and_b32 v{t}, s34, v{t}
        v_sub_f32 v{t+1}, -v{m}, v{t}
        v_cvt_pk_bf16_f32 v{t+2}, v{t+1}, v{t+1}
        v_and_b32 v{t+2}, s34, v{t+2}
        v_sub_f32 v{t+1}, v{t+1}, v{t+2}
        v_cvt_pk_bf16_f32 v{Q+8*i+6}, v{t}, v{t+2}
        v_cvt_pk_bf16_f32 v{Q+8*i+7}, v{t+1}, 0
        """)
    a("s_mov_b32 exec_lo, 0")
    for i in range(4): set_m(i,TMP+8+i,TMP+12)
    a("s_mov_b64 exec, -1")
    def qk(buf,qi,sb,half):
        d=R(S+16*sb,16)
        if half==0: return f"{MF} {d}, {R(KV+16*buf)}, {R(Q+8*qi)}, 0"
        return f"{MF} {d}, {R(KV+16*buf+4)}, {R(Q+8*qi+4)}, {d}"
    def pv(buf,qi,pb,half):
        d=R(16*qi,16,'a')
        return f"{MF} {d}, {R(KV+16*buf+8+4*half)}, {R(P+8*pb+4*half)}, {d}"
    a("s_waitcnt vmcnt(12)")
    a(qk(0,0,0,0)); a(qk(0,0,0,1))
    a("s_mov_b32 s35, 0\ns_nop 7\ns_nop 3")
    pf.stamp()
    a("B_loop:")
    for kt in range(4):
        for qi in range(4):
            u=kt*4+qi; sb=u%2; pb=u%2
            nk,nq=((kt+(qi+1)//4)%4,(qi+1)%4)
            pk,pq=((kt+(qi-1)//4)%4,(qi-1)%4)
            ms=[qk(nk,nq,1-sb,0),qk(nk,nq,1-sb,1),pv(pk,pq,1-pb,0),pv(pk,pq,1-pb,1)]
            for g in range(4):
                if g==0 and qi==3: a("s_waitcnt vmcnt(10)")
                if g==2 and qi==1: a("s_waitcnt vmcnt(10)")
                a(ms[g])
                if g==0 and qi==3: ldK(kt,36)
                if g==2 and qi==1: ldV((kt-1)%4,36)
                if g==0 and qi==2:
                    a("s_add_u32 s31, s31, 4096\ns_cmp_lt_u32 s31, s38\ns_cselect_b32 s36, s31, 0x80000000")
                b=S+16*sb+4*g
                for e in range(4): a(f"v_exp_f32 v{b+e}, v{b+e}")
                a(f"v_cvt_pk_bf16_f32 v{P+8*pb+2*g}, v{b}, v{b+1}")
                a(f"v_cvt_pk_bf16_f32 v{P+8*pb+2*g+1}, v{b+2}, v{b+3}")
    a("s_add_u32 s35, s35, 1\ns_cmp_lt_u32 s35, 4\ns_cbranch_scc1 B_loop")
    pf.stamp()
    a(pv(3,3,1,0)); a(pv(3,3,1,1))
    RD=96
    a("s_waitcnt vmcnt(0)")
    reduce4(a,pf,'a',0,RD)
    O=RD+48
    a(f"""
    v_mov_b32 v5, v{O+12}
    v_mov_b32 v6, v{O+12}
    v_permlane32_swap_b32 v6, v5
    v_rcp_f32 v5, v5
    s_lshl_b32 s26, s26, 2
    s_add_u32 s26, s26, s24
    s_lshl_b32 s26, s26, 5
    s_lshl_b32 s25, s25, 1
    s_add_u32 s26, s26, s25
    s_lshl_b32 s26, s26, 10
    s_add_u32 s26, s26, {WS_O}
    """)
    for r in range(16): a(f"v_mul_f32 v{O+r}, v{O+r}, v5")
    for q in range(8): a(f"v_cvt_pk_bf16_f32 v{16+q}, v{O+2*q}, v{O+2*q+1}")
    a(f"""
    buffer_store_dwordx4 {R(16)}, v3, s[20:23], s26 offen
    buffer_store_dwordx4 {R(20)}, v3, s[20:23], s26 offen offset:1024
    """)
    pf.stamp()
    if PROF: a("s_waitcnt vmcnt(0)")
    pf.flush()
    a("B_end:\ns_endpgm")
    return head("attn_kernel")+a.finish()+kd("attn_kernel",208,64)

def tile64_ids(a):
    a(f"""
    s_and_b32 s25, s2, 7
    s_lshr_b32 s27, s2, 3
    s_mul_i32 s28, s27, 9363
    s_lshr_b32 s28, s28, 16                 ; j/7
    s_mul_i32 s26, s28, 7
    s_sub_u32 s26, s27, s26                 ; nb
    s_lshl_b32 s28, s28, 3
    s_add_u32 s25, s25, s28                 ; tb
    s_lshr_b32 s27, s24, 1                  ; w1
    s_and_b32 s28, s24, 1                   ; w0
    s_lshl_b32 s25, s25, 1
    s_lshl_b32 s26, s26, 1
    s_add_u32 s44, s25, s27
    s_xor_b32 s45, s44, 1
    s_add_u32 s46, s26, s28
    s_xor_b32 s47, s46, 1
    s_mul_i32 s43, s24, 12288
    """)
    for i in range(1,4):
        a(f"s_xor_b32 s{39+i}, s24, {i}\ns_mul_i32 s{39+i}, s{39+i}, 3\ns_add_u32 s{39+i}, s{39+i}, {i-1}\ns_lshl_b32 s{39+i}, s{39+i}, 12")

def k_wo():
    a=Asm()
    pf=common(a,224,"C_end",4)
    a(f"s_load_dwordx2 s[4:5], s[0:1], {KA_X}")
    tile64_ids(a)
    ACC=16; T=80; W=144; XR=208; GA=216
    a(f"""
    s_lshl_b32 s29, s24, 13
    s_lshl_b32 s48, s44, 15
    s_lshl_b32 s49, s45, 15
    s_lshl_b32 s50, s46, 15
    s_lshl_b32 s51, s47, 15
    s_add_u32 s30, s29, {WS_O}
    s_add_u32 s48, s48, s30
    s_add_u32 s49, s49, s30
    s_add_u32 s30, s29, {WS_WO}
    s_add_u32 s50, s50, s30
    s_add_u32 s51, s51, s30
    s_waitcnt lgkmcnt(0)
    """)
    srd(a,20,32,33,WS_SIZE)
    srd(a,16,4,5,2048*896)
    for g in range(2):
        for i in range(4):
            s=4*g+i
            for (base,sr) in ((W,50),(T,48),(W+32,51),(T+32,49)):
                a(f"buffer_load_dwordx4 {R(base+4*s)}, v3, s[20:23], s{sr} offen offset:{i*1024}")
        if g==0:
            for sr in (48,49,50,51): a(f"s_add_u32 s{sr}, s{sr}, 4096")
    a(f"""
    v_and_b32 v5, 31, v1
    v_lshrrev_b32 v6, 5, v1
    s_lshl_b32 s29, s44, 5
    v_add_u32 v5, s29, v5
    v_mul_u32_u24 v5, 896, v5
    v_lshl_add_u32 v5, v6, 3, v5
    s_lshl_b32 s29, s46, 6
    v_lshlrev_b32 v6, 4, v6
    s_lshl_b32 s30, s46, 7
    s_add_u32 s30, s30, {WS_MOD+2*1792}
    """)
    for q in range(4):
        a(f"buffer_load_dwordx2 {R(XR+2*q,2)}, v5, s[16:19], s29 offen offset:{16*q}")
        a(f"buffer_load_dwordx4 {R(GA+4*q)}, v6, s[20:23], s30 offen offset:{32*q}")
    pf.stamp()
    for s in range(8):
        a(f"s_waitcnt vmcnt({8+4*(7-s)})")
        if s==0: pf.stamp()
        for i in range(4):
            ta,wb=i>>1,i&1
            d=R(ACC+16*i,16)
            a(f"{MF} {d}, {R(W+32*wb+4*s)}, {R(T+32*ta+4*s)}, {'0' if s==0 else d}")
    RD=80
    pf.stamp()
    reduce4(a,pf,'v',ACC,RD)
    O=RD+48
    a(f"""
    s_mov_b32 s34, 0xffff0000
    s_mul_i32 s29, s44, {28*KB}
    s_lshl_b32 s30, s46, 11
    s_add_u32 s29, s29, s30
    s_add_u32 s29, s29, {WS_X1}
    s_waitcnt vmcnt(0)
    """)
    for q in range(8):
        a(f"v_lshlrev_b32 v{16+2*q}, 16, v{XR+q}\nv_and_b32 v{17+2*q}, s34, v{XR+q}")
    for r in range(16): a(f"v_fmac_f32 v{16+r}, v{O+r}, v{GA+r}")
    for q in range(8): a(f"v_cvt_pk_bf16_f32 v{32+q}, v{16+2*q}, v{17+2*q}")
    a(f"""
    buffer_store_dwordx4 {R(32)}, v3, s[20:23], s29 offen
    buffer_store_dwordx4 {R(36)}, v3, s[20:23], s29 offen offset:1024
    """)
    pf.stamp()
    if PROF: a("s_waitcnt vmcnt(0)")
    pf.flush()
    a("C_end:\ns_endpgm")
    return head("wo_kernel")+a.finish()+kd("wo_kernel",232)

def k_gu():
    a=Asm()
    pf=common(a,256,"D_end",5)
    T=64; ACC=16; WB=176; NB=8; EXT=208; TM=216; ST=8
    C1=-2*math.sqrt(2/math.pi)*LOG2E; C2=C1*0.044715
    a(f"""
    s_and_b32 s25, s2, 7
    s_lshr_b32 s27, s2, 3
    s_and_b32 s26, s27, 7
    s_lshl_b32 s26, s26, 1
    s_and_b32 s28, s25, 1
    s_add_u32 s26, s26, s28                 ; rb
    s_lshr_b32 s27, s27, 3
    s_lshl_b32 s27, s27, 2
    s_lshr_b32 s25, s25, 1
    s_add_u32 s25, s25, s27                 ; fb
    s_lshl_b32 s26, s26, 2
    s_add_u32 s26, s26, s24                 ; tt
    s_mul_i32 s27, s26, {28*KB}
    s_add_u32 s27, s27, {WS_X1}             ; T base
    s_mul_i32 s28, s25, {7*30*KB}
    s_add_u32 s28, s28, {WS_WGU}
    s_lshl_b32 s29, s24, 13                 ; 8w KB
    s_add_u32 s28, s28, s29
    s_cmp_eq_u32 s24, 3
    s_movk_i32 s37, 4096
    s_cmovk_i32 s37, 2048
    s_mul_i32 s38, s26, {112*KB}
    s_mul_i32 s39, s25, {7*KB}
    s_add_u32 s38, s38, s39
    s_add_u32 s38, s38, {WS_HH}
    s_mov_b32 s34, 0xffff0000
    s_mov_b32 s50, 0x3f803f80
    s_waitcnt lgkmcnt(0)
    """)
    srd(a,20,32,33,WS_SIZE)
    def dma(tile,slot):
        a(f"s_add_u32 s30, s29, {slot*30*KB}\ns_mov_b32 m0, s30\ns_add_u32 s31, s28, {tile*30*KB}")
        for i in range(4): a(f"buffer_load_dwordx4 v3, s[20:23], s31 offen offset:{i*1024} lds")
        a("s_add_u32 s30, s30, s37\ns_mov_b32 m0, s30\ns_add_u32 s31, s31, s37")
        for i in range(4): a(f"buffer_load_dwordx4 v3, s[20:23], s31 offen offset:{i*1024} lds")
    dma(0,0)
    for g in range(7):
        a(f"s_add_u32 s31, s27, {4*g*KB}")
        for i in range(4): a(f"buffer_load_dwordx4 {R(T+4*(4*g+i))}, v3, s[20:23], s31 offen offset:{i*1024}")
    dma(1,1); dma(2,2)
    for i in range(4): a(f"v_mov_b32 v{ST+i}, 0")
    PF=4
    def rd(s,base): a(f"ds_read_b128 {R(WB+4*(s%NB))}, v{base} offset:{s*KB}")
    def epi_ops(acc,dst_s):
        L=[]
        for r in range(8):
            g=acc+r; u=acc+8+r; t=TM+(r%2)*3
            L+= [f"v_mul_f32 v{t}, v{g}, v{g}",
                 f"v_fma_f32 v{t}, v{t}, v{ST+5}, v{ST+4}",
                 f"v_mul_f32 v{t}, v{t}, v{g}",
                 f"v_exp_f32 v{t}, v{t}",
                 f"v_mul_f32 v{t+1}, v{g}, v{u}",
                 f"v_fma_f32 v{t}, v{t}, v{ST+6}, v{ST+6}",
                 f"v_rcp_f32 v{t}, v{t}",
                 "NOP",
                 f"v_mul_f32 v{TM+8+r}, v{t+1}, v{t}"]
            if r%2==1: L.append(f"v_cvt_pk_bf16_f32 v{TM+16+r//2}, v{TM+8+r-1}, v{TM+8+r}")
        L=[x for x in L if x!="NOP"]
        L.append(f"buffer_store_dwordx4 {R(TM+16)}, v3, s[20:23], s38 offen")
        L.append("s_add_u32 s38, s38, 1024")
        return L
    pf.stamp()
    a("s_waitcnt vmcnt(44)\ns_barrier")
    pf.stamp()
    for s in range(PF): rd(s,3)
    for s in range(28):
        if s+PF<30: rd(s+PF,3)
        a(f"s_waitcnt vmcnt({16+27-s}) lgkmcnt({min(PF,29-s)})")
        d=R(ACC,16)
        a(f"{MF} {d}, {R(WB+4*(s%NB))}, {R(T+4*s)}, {'0' if s==0 else d}")
        for i in range(4):
            a(f"v_dot2c_f32_bf16 v{ST+i%2}, s50, v{T+4*s+i}")
            a(f"v_dot2c_f32_bf16 v{ST+2+i%2}, v{T+4*s+i}, v{T+4*s+i}")
    dma(3,3); dma(4,4)
    a(f"""
    v_add_f32 v{ST}, v{ST}, v{ST+1}
    v_add_f32 v{ST+2}, v{ST+2}, v{ST+3}
    v_mov_b32 v{ST+1}, v{ST}
    v_mov_b32 v{ST+3}, v{ST+2}
    v_permlane32_swap_b32 v{ST}, v{ST+1}
    v_permlane32_swap_b32 v{ST+2}, v{ST+3}
    v_add_f32 v{ST}, v{ST}, v{ST+1}
    v_add_f32 v{ST+2}, v{ST+2}, v{ST+3}
    v_mul_f32 v{ST}, {hx(f2u(1/448))}, v{ST}           ; mu
    v_mul_f32 v{ST+2}, {hx(f2u(1/448))}, v{ST+2}       ; E[x^2]
    v_fma_f32 v{ST+2}, -v{ST}, v{ST}, v{ST+2}          ; var
    v_max_f32 v{ST+2}, 0, v{ST+2}
    v_add_f32 v{ST+6}, {hx(f2u(1e-5))}, v{ST+2}
    v_rsq_f32 v{ST+3}, v{ST+6}                         ; r
    v_cvt_pk_bf16_f32 v{EXT+4}, -v{ST}, -v{ST}
    v_mul_f32 v{ST+1}, v{ST+6}, v{ST+3}                ; sigma
    v_mul_f32 v{ST+4}, {hx(f2u(C1))}, v{ST+3}
    v_cvt_pk_bf16_f32 v{EXT}, v{ST+1}, v{ST+1}
    v_mul_f32 v{ST+5}, v{ST+3}, v{ST+3}
    v_mul_f32 v{ST+5}, v{ST+5}, v{ST+3}
    v_mul_f32 v{ST+5}, {hx(f2u(C2))}, v{ST+5}
    v_mov_b32 v{EXT+1}, v{EXT}
    v_mov_b32 v{EXT+2}, v{EXT}
    v_mov_b32 v{EXT+3}, v{EXT}
    v_mov_b32 v{EXT+5}, v{EXT+4}
    v_mov_b32 v{EXT+6}, v{EXT+4}
    v_mov_b32 v{EXT+7}, v{EXT+4}
    s_waitcnt lgkmcnt(0)
    """)
    for s in (28,29):
        a(f"{MF} {R(ACC,16)}, {R(WB+4*(s%NB))}, {R(EXT+4*(s-28))}, {R(ACC,16)}")
    pend=[('d',1,8),('d',2,8),('d',3,8),('d',4,8)]
    for p in range(1,7):
        idx=[i for i,x in enumerate(pend) if x[0]=='d' and x[1]==p][0]
        younger=sum(x[2] for x in pend[idx+1:])
        pend=pend[idx+1:]
        pf.stamp()
        a(f"s_waitcnt vmcnt({younger})\ns_barrier")
        pf.stamp()
        slot=p%5
        a(f"v_add_u32 v4, {slot*30*KB}, v3")
        for s in range(PF): rd(s,4)
        if p+4<=6:
            dma(p+4,(p-1)%5); pend.append(('d',p+4,8))
        acc=ACC+16*(p%2); prev=ACC+16*((p-1)%2)
        E=epi_ops(prev,None); ne=len(E); done=0
        for s in range(30):
            if s+PF<30: rd(s+PF,4)
            a(f"s_waitcnt lgkmcnt({min(PF,29-s)})")
            d=R(acc,16); t=R(T+4*s) if s<28 else R(EXT+4*(s-28))
            a(f"{MF} {d}, {R(WB+4*(s%NB))}, {t}, {'0' if s==0 else d}")
            if s>=2:
                tgt=min(ne,(s-1)*3)
                while done<tgt: a(E[done]); done+=1
        while done<ne: a(E[done]); done+=1
        pend.append(('s',p,1))
    pf.stamp()
    for x in epi_ops(ACC+16*(6%2),None): a(x)
    pf.stamp()
    if PROF: a("s_waitcnt vmcnt(0)")
    pf.flush()
    a("D_end:\ns_endpgm")
    return head("gu_kernel")+a.finish()+kd("gu_kernel",240)

def k_down():
    a=Asm()
    pf=common(a,224,"E_end",6)
    a(f"s_load_dwordx2 s[4:5], s[0:1], {KA_OUT}")
    tile64_ids(a)
    ACC=16; B=80; XR=192; GB=200
    a(f"""
    s_mul_i32 s29, s24, {28*KB}
    s_mul_i32 s48, s44, {112*KB}
    s_mul_i32 s49, s45, {112*KB}
    s_mul_i32 s50, s46, {112*KB}
    s_mul_i32 s51, s47, {112*KB}
    s_add_u32 s30, s29, {WS_HH}
    s_add_u32 s48, s48, s30
    s_add_u32 s49, s49, s30
    s_add_u32 s30, s29, {WS_WD}
    s_add_u32 s50, s50, s30
    s_add_u32 s51, s51, s30
    s_mul_i32 s29, s44, {28*KB}
    s_lshl_b32 s30, s46, 11
    s_add_u32 s29, s29, s30
    s_add_u32 s29, s29, {WS_X1}
    s_lshl_b32 s30, s46, 7
    s_add_u32 s30, s30, {WS_MOD+3*1792}
    v_lshrrev_b32 v6, 5, v1
    v_lshlrev_b32 v7, 4, v6
    v_add_u32 v8, 4096, v3
    s_waitcnt lgkmcnt(0)
    """)
    srd(a,20,32,33,WS_SIZE)
    srd(a,16,4,5,2048*896)
    a(f"buffer_load_dwordx4 {R(XR)}, v3, s[20:23], s29 offen\nbuffer_load_dwordx4 {R(XR+4)}, v3, s[20:23], s29 offen offset:1024")
    for q in range(4): a(f"buffer_load_dwordx4 {R(GB+4*q)}, v7, s[20:23], s30 offen offset:{32*q}")
    def ld(j):
        va = 3 if j<4 else 8
        for i,sr in enumerate((50,48,51,49)):
            a(f"buffer_load_dwordx4 {R(B+16*j+4*i)}, v{va}, s[20:23], s{sr} offen offset:{(j%4)*1024}")
    for j in range(7): ld(j)
    for i in range(64): a(f"v_mov_b32 v{ACC+i}, 0")
    a("s_mov_b32 s35, 0")
    pf.stamp()
    a("E_loop:")
    a("s_cmp_lt_u32 s35, 3\ns_mov_b32 s36, 0x40000000\ns_cmovk_i32 s36, 7168")
    for sr in (48,49,50,51): a(f"s_add_u32 s{sr}, s{sr}, s36")
    for j in range(7):
        a("s_waitcnt vmcnt(24)")
        for i in range(4):
            ta,wb=i>>1,i&1
            d=R(ACC+16*i,16)
            a(f"{MF} {d}, {R(B+16*j+8*wb)}, {R(B+16*j+8*ta+4)}, {d}")
        ld(j)
    a("s_add_u32 s35, s35, 1\ns_cmp_lt_u32 s35, 4\ns_cbranch_scc1 E_loop")
    a("s_waitcnt vmcnt(0)")
    RD=80
    pf.stamp()
    reduce4(a,pf,'v',ACC,RD)
    O=RD+48
    a(f"""
    s_mov_b32 s34, 0xffff0000
    v_and_b32 v5, 31, v1
    s_lshl_b32 s29, s44, 5
    v_add_u32 v5, s29, v5
    v_mul_u32_u24 v5, 896, v5
    v_lshl_add_u32 v5, v6, 3, v5
    s_lshl_b32 s29, s46, 6
    """)
    for q in range(8):
        a(f"v_lshlrev_b32 v{16+2*q}, 16, v{XR+q}\nv_and_b32 v{17+2*q}, s34, v{XR+q}")
    for r in range(16): a(f"v_fmac_f32 v{16+r}, v{O+r}, v{GB+r}")
    for q in range(8): a(f"v_cvt_pk_bf16_f32 v{32+q}, v{16+2*q}, v{17+2*q}")
    for q in range(4): a(f"buffer_store_dwordx2 {R(32+2*q,2)}, v5, s[16:19], s29 offen offset:{16*q}")
    pf.stamp()
    if PROF: a("s_waitcnt vmcnt(0)")
    pf.flush()
    a("E_end:\ns_endpgm")
    return head("down_kernel")+a.finish()+kd("down_kernel",216)

def kernels():
    return [("qkv_kernel",256,256,87*KB,k_qkv()),
            ("attn_kernel",256,256,48*KB,k_attn()),
            ("wo_kernel",224,256,48*KB,k_wo()),
            ("gu_kernel",256,256,150*KB,k_gu()),
            ("down_kernel",224,256,48*KB,k_down())]
```
